```python
import torch

def _softmax(x, axis=-1):
    return torch.softmax(x, dim=axis)
def _gelu(x):
    return torch.nn.functional.gelu(x, approximate="tanh")
def _silu(x):
    return torch.nn.functional.silu(x)
def _sigmoid(x):
    return torch.sigmoid(x)
def _layernorm(x, axis=-1, eps=1e-5):
    m = x.mean(dim=axis, keepdim=True)
    v = x.var(dim=axis, keepdim=True, unbiased=False)
    return (x - m) / torch.sqrt(v + eps)
def _scatter_add(tgt, idx, src, axis=0):
    return tgt.clone().index_add_(axis, idx, src)
def _segment_sum(src, seg, n):
    out = torch.zeros((n,) + src.shape[1:], dtype=src.dtype)
    return out.index_add_(0, seg, src)
def _pad(x, pw):
    flat = tuple(v for pair in reversed(pw) for v in pair)
    return torch.nn.functional.pad(x, flat)

kernel_name = 'recurrent_scan__mha_block_cached__glu_gated_reglu__prompt'

def setup_inputs():

    _w = (lambda a: (lambda t: t.to(torch.bfloat16) if t.is_floating_point() else t)(torch.as_tensor(a)))
    def _A_setup():
        B, Sq, D = 1, 2048, 512
        H, Sk, Dh = 32, 2048, 128
        return {
            "x": _w((lambda *s: torch.randn(*s, dtype=torch.bfloat16) * 0.05)(B, Sq, D)),
            "k_cache": _w((lambda *s: torch.randn(*s, dtype=torch.bfloat16) * 1.6)(B, H, Sk, Dh)),
            "v_cache": _w((lambda *s: torch.randn(*s, dtype=torch.bfloat16) * 1.6)(B, H, Sk, Dh)),
            "wq": _w((lambda *s: torch.randn(*s, dtype=torch.bfloat16) * 1.6)(D, H * Dh) * (D ** -0.5)),
            "wo": _w((lambda *s: torch.randn(*s, dtype=torch.bfloat16) * 1.6)(H * Dh, D) * ((H * Dh) ** -0.5)),
        }
    _A_in = _A_setup()

    def _B_setup():
        B, S, D, F = 1, 2048, 512, 1792
        return {
            "x": _w((lambda *s: torch.randn(*s, dtype=torch.bfloat16) * 0.05)(B, S, D)),
            "W_gate": _w((lambda *s: torch.randn(*s, dtype=torch.bfloat16) * 0.2)(D, F) * (2.0 / D) ** 0.5),
            "W_up": _w((lambda *s: torch.randn(*s, dtype=torch.bfloat16) * 0.2)(D, F) * (2.0 / D) ** 0.5),
            "W_down": _w((lambda *s: torch.randn(*s, dtype=torch.bfloat16) * 0.2)(F, D) * (1.0 / F) ** 0.5),
        }
    _B_in = _B_setup()

    return {
        "A_x": _A_in["x"],
        "A_k_cache": _A_in["k_cache"],
        "A_v_cache": _A_in["v_cache"],
        "A_wq": _A_in["wq"],
        "A_wo": _A_in["wo"],
        "B_x": _B_in["x"],
        "B_W_gate": _B_in["W_gate"],
        "B_W_up": _B_in["W_up"],
        "B_W_down": _B_in["W_down"],
    }

def reference(A_x, A_k_cache, A_v_cache, A_wq, A_wo, B_x, B_W_gate, B_W_up, B_W_down):
    def _A_ref(x, k_cache, v_cache, wq, wo):
        B, Sq, D = x.shape
        H, Dh = 32, 128
        q = (lambda x, *d: x.permute(*d))((x @ wq).reshape(B, Sq, H, Dh), 0, 2, 1, 3)
        scores = torch.einsum("bhqd,bhkd->bhqk", q, k_cache) * (Dh ** -0.5)
        p = _softmax(scores, axis=-1)
        o = torch.einsum("bhqk,bhkd->bhqd", p, v_cache)
        return (lambda x, *d: x.permute(*d))(o, 0, 2, 1, 3).reshape(B, Sq, H * Dh) @ wo

    def _B_ref(x, W_gate, W_up, W_down):
        gate = torch.einsum("bsd,df->bsf", x, W_gate)
        up = torch.einsum("bsd,df->bsf", x, W_up)
        gate = gate * (lambda x, dt: x.to(dt))(gate > 0, gate.dtype)
        h = gate * up
        return torch.einsum("bsf,fd->bsd", h, W_down)

    x = A_x
    xn = _layernorm(x, axis=-1)
    s = _A_ref(xn, A_k_cache, A_v_cache, A_wq, A_wo)
    g = _silu(_B_ref(xn, B_W_gate, B_W_up, B_W_down))
    return x + s * g
```

```python
from gl import Asm
HDR = "recurrent_scan__mha_block_cached__glu_gated_reglu__prompt"

WS_XN = 0x0
WS_H  = 0x400000
WS_O  = 0x1000000

def srd(a, d, lo, hi, size):
    a("s_mov_b32 s%d, s%d", d, lo)
    a("s_and_b32 s%d, s%d, 0xffff", d + 1, hi)
    a("s_mov_b32 s%d, 0x%x", d + 2, size)
    a("s_mov_b32 s%d, 0x20000", d + 3)

def srd_off(a, d, lo, hi, off_sgpr_or_imm, size):
    o = off_sgpr_or_imm if isinstance(off_sgpr_or_imm, str) else "0x%x" % off_sgpr_or_imm
    a("s_add_u32 s%d, s%d, %s", d, lo, o)
    a("s_addc_u32 s%d, s%d, 0", d + 1, hi)
    a("s_and_b32 s%d, s%d, 0xffff", d + 1, d + 1)
    if isinstance(size, str): a("s_mov_b32 s%d, %s", d + 2, size)
    else: a("s_mov_b32 s%d, 0x%x", d + 2, size)
    a("s_mov_b32 s%d, 0x20000", d + 3)

def allreduce_rows(a, vs, tmp, op="v_add_f32"):
    for ctl in ("quad_perm:[1,0,3,2]", "quad_perm:[2,3,0,1]", "row_half_mirror", "row_mirror"):
        a("s_nop 1")
        for v in vs:
            a("%s_dpp v%d, v%d, v%d %s row_mask:0xf bank_mask:0xf", op, v, v, v, ctl)
    allreduce_g(a, vs, tmp, op)

def allreduce_g(a, vs, tmp, op="v_add_f32"):
    for sw in ("v_permlane16_swap_b32", "v_permlane32_swap_b32"):
        for v, t in zip(vs, tmp):
            a("v_mov_b32 v%d, v%d", t, v)
        a("s_nop 1")
        for v, t in zip(vs, tmp):
            a("%s v%d, v%d", sw, v, t)
        a("s_nop 1")
        for v, t in zip(vs, tmp):
            a("%s v%d, v%d, v%d", op, v, v, t)
```

```python
from gen_common import *

def k0():
    a = Asm()
    a("s_cmp_ge_u32 s2, 256"); a("s_cbranch_scc1 K0_end")
    a("s_load_dwordx2 s[4:5], s[0:1], 0")
    a("s_load_dwordx2 s[6:7], s[0:1], 88")
    a("v_and_b32 v1, 63, v0")
    a("v_lshrrev_b32 v2, 6, v0")
    a("s_lshl_b32 s3, s2, 13")
    a("v_lshlrev_b32 v3, 11, v2")
    a("v_lshl_add_u32 v3, v1, 4, v3")
    a("v_add_u32 v3, s3, v3")
    a("s_waitcnt lgkmcnt(0)")
    srd(a, 8, 4, 5, 0x200000)
    srd_off(a, 12, 6, 7, WS_XN, 0x200000)
    a("buffer_load_dwordx4 v[8:11], v3, s[8:11], 0 offen")
    a("buffer_load_dwordx4 v[12:15], v3, s[8:11], 0 offen offset:1024")
    a("v_mul_u32_u24 v4, 2080, v2")
    a("v_lshl_add_u32 v4, v1, 4, v4")
    a("v_and_b32 v5, 7, v0")
    a("v_bfe_u32 v6, v0, 3, 2")
    a("v_lshrrev_b32 v7, 5, v0")
    a("v_mul_u32_u24 v40, 1040, v5")
    a("v_lshl_add_u32 v40, v7, 6, v40")
    a("v_lshl_add_u32 v40, v6, 3, v40")
    a("s_lshr_b32 s16, s2, 3"); a("s_lshl_b32 s16, s16, 16")
    a("s_bfe_u32 s17, s2, 0x20001"); a("s_lshl_b32 s17, s17, 10"); a("s_add_u32 s16, s16, s17")
    a("s_and_b32 s17, s2, 1"); a("s_lshl_b32 s17, s17, 7"); a("s_add_u32 s16, s16, s17")
    a("v_lshlrev_b32 v41, 12, v7")
    a("v_lshl_add_u32 v41, v6, 8, v41")
    a("v_lshl_add_u32 v41, v5, 4, v41")
    a("v_add_u32 v41, s16, v41")
    a("s_waitcnt vmcnt(0)")
    for tk, (src, dst) in enumerate(((8, 16), (12, 24))):
        for i in range(4):
            a("v_lshlrev_b32 v%d, 16, v%d", dst + 2 * i, src + i)
            a("v_and_b32 v%d, 0xffff0000, v%d", dst + 2 * i + 1, src + i)
    for tk, dst in enumerate((16, 24)):
        a("v_add_f32 v%d, v%d, v%d", 32 + tk, dst, dst + 1)
    for i in range(2, 8):
        for tk, dst in enumerate((16, 24)):
            a("v_add_f32 v%d, v%d, v%d", 32 + tk, 32 + tk, dst + i)
    allreduce_rows(a, [32, 33], [34, 35])
    a("s_mov_b32 s20, 0x3b000000")
    for tk in range(2): a("v_mul_f32 v%d, s20, v%d", 32 + tk, 32 + tk)
    for tk, dst in enumerate((16, 24)):
        a("v_sub_f32 v%d, v%d, v%d", 36 + tk, dst, 32 + tk)
    for tk in range(2):
        a("v_mul_f32 v%d, v%d, v%d", 38 + tk, 36 + tk, 36 + tk)
    for i in range(1, 8):
        for tk, dst in enumerate((16, 24)):
            a("v_sub_f32 v%d, v%d, v%d", 36 + tk, dst + i, 32 + tk)
        for tk in range(2):
            a("v_fmac_f32 v%d, v%d, v%d", 38 + tk, 36 + tk, 36 + tk)
    allreduce_rows(a, [38, 39], [34, 35])
    for tk in range(2): a("v_mul_f32 v%d, s20, v%d", 38 + tk, 38 + tk)
    a("v_cvt_pk_bf16_f32 v34, v32, v33")
    a("v_cvt_pk_bf16_f32 v35, v38, v39")
    a("v_lshlrev_b32 v32, 16, v34"); a("v_and_b32 v33, 0xffff0000, v34")
    a("v_lshlrev_b32 v38, 16, v35"); a("v_and_b32 v39, 0xffff0000, v35")
    a("v_add_f32 v38, 0x3727c5ac, v38"); a("v_add_f32 v39, 0x3727c5ac, v39")
    a("v_cvt_pk_bf16_f32 v35, v38, v39")
    a("v_lshlrev_b32 v38, 16, v35"); a("v_and_b32 v39, 0xffff0000, v35")
    a("v_sqrt_f32 v38, v38"); a("v_sqrt_f32 v39, v39")
    a("s_nop 0")
    a("v_cvt_pk_bf16_f32 v35, v38, v39")
    a("v_lshlrev_b32 v38, 16, v35"); a("v_and_b32 v39, 0xffff0000, v35")
    a("v_rcp_f32 v38, v38"); a("v_rcp_f32 v39, v39")
    a("s_nop 0")
    for tk, (src, dst) in enumerate(((8, 16), (12, 24))):
        for i in range(4):
            a("v_sub_f32 v%d, v%d, v%d", dst + 2 * i, dst + 2 * i, 32 + tk)
            a("v_sub_f32 v%d, v%d, v%d", dst + 2 * i + 1, dst + 2 * i + 1, 32 + tk)
            a("v_cvt_pk_bf16_f32 v%d, v%d, v%d", src + i, dst + 2 * i, dst + 2 * i + 1)
        for i in range(4):
            a("v_lshlrev_b32 v%d, 16, v%d", dst + 2 * i, src + i)
            a("v_and_b32 v%d, 0xffff0000, v%d", dst + 2 * i + 1, src + i)
            a("v_mul_f32 v%d, v%d, v%d", dst + 2 * i, dst + 2 * i, 38 + tk)
            a("v_mul_f32 v%d, v%d, v%d", dst + 2 * i + 1, dst + 2 * i + 1, 38 + tk)
            a("v_cvt_pk_bf16_f32 v%d, v%d, v%d", src + i, dst + 2 * i, dst + 2 * i + 1)
    a("ds_write_b128 v4, v[8:11]")
    a("ds_write_b128 v4, v[12:15] offset:1040")
    a("s_waitcnt lgkmcnt(0)"); a("s_barrier")
    a("ds_read_b64 v[16:17], v40"); a("ds_read_b64 v[18:19], v40 offset:32")
    a("ds_read_b64 v[20:21], v40 offset:512"); a("ds_read_b64 v[22:23], v40 offset:544")
    a("v_add_u32 v42, 0x8000, v41")
    a("s_waitcnt lgkmcnt(2)")
    a("buffer_store_dwordx4 v[16:19], v41, s[12:15], 0 offen")
    a("s_waitcnt lgkmcnt(0)")
    a("buffer_store_dwordx4 v[20:23], v42, s[12:15], 0 offen")
    a.label("K0_end")
    a("s_endpgm")
    return a.text()
```

```python
from gen_common import *
M = "v_mfma_f32_16x16x32_bf16"
K12_LDS = 147456

V_LANE = 1
V_XN = 10
V_QD0, V_QD1, V_GD = 11, 12, 13
V_QA = 14
V_GA = 18
V_KA = 22
V_VA = 26
V_KVD = 34
V_L = 36
V_T = 40
V_X = 48
V_S = [64, 96]
V_NEGM = 128
V_P = [144, 160]
V_QACC = 128
A_O = 0
A_Q = 128
A_K = 192
A_V = 224
A_B = 128
A_A = 176
S_W = 3
SRD_XN, SRD_WQ, SRD_WG, SRD_WU, SRD_K, SRD_V, SRD_H, SRD_O = 8, 12, 16, 20, 24, 28, 32, 36
S_HEAD, S_QB, S_TG, S_J = 40, 41, 42, 43
S_REDO = 44
S_KOFF, S_KOFF2, S_VOFF, S_VOFF2 = 45, 46, 47, 48
S_KM0, S_VM0 = 49, 50
S_CNT = 51
S_T0, S_T1, S_T2 = 52, 53, 54
S_C = 55
S_WM0 = 56
S_XOFF, S_QOFF, S_GOFF = 57, 58, 59

class VM:
    def __init__(self): self.ops = []
    def add(self, tag): self.ops.append(tag)
    def wait_for(self, tags):
        idx = max(i for i, t in enumerate(self.ops) if t in tags)
        return len(self.ops) - 1 - idx

def setup(a):
    a("s_cmp_ge_u32 s2, 256"); a("s_cbranch_scc1 K12_end")
    a("s_load_dwordx2 s[4:5], s[0:1], 88")
    a("s_load_dwordx2 s[6:7], s[0:1], 24")
    a("s_load_dwordx2 s[60:61], s[0:1], 48")
    a("s_load_dwordx2 s[62:63], s[0:1], 56")
    a("s_load_dwordx2 s[64:65], s[0:1], 8")
    a("s_load_dwordx2 s[66:67], s[0:1], 16")
    a("v_and_b32 v1, 63, v0")
    a("v_lshrrev_b32 v2, 6, v0")
    a("s_and_b32 s%d, s2, 7", S_HEAD); a("s_lshl_b32 s%d, s%d, 2", S_HEAD, S_HEAD)
    a("s_bfe_u32 s%d, s2, 0x20003", S_T0); a("s_add_u32 s%d, s%d, s%d", S_HEAD, S_HEAD, S_T0)
    a("v_readfirstlane_b32 s%d, v2", S_W)
    a("s_lshr_b32 s%d, s2, 5", S_QB)
    a("s_min_u32 s%d, s%d, 27", S_J, S_HEAD)
    a("s_lshl_b32 s%d, s%d, 2", S_TG, S_QB); a("s_add_u32 s%d, s%d, s%d", S_TG, S_TG, S_W)
    a("s_mov_b32 s%d, 0", S_REDO)
    a("s_waitcnt lgkmcnt(0)")
    a("s_lshl_b32 s%d, s%d, 16", S_T0, S_TG); srd_off(a, SRD_XN, 4, 5, "s%d" % S_T0, 65536)
    a("s_lshl_b32 s%d, s%d, 8", S_T0, S_HEAD); a("s_sub_u32 s%d, 0x400000, s%d", S_T1, S_T0)
    srd_off(a, SRD_WQ, 6, 7, "s%d" % S_T0, "s%d" % S_T1)
    a("s_lshl_b32 s%d, s%d, 7", S_T0, S_J); a("s_sub_u32 s%d, 0x1c0000, s%d", S_T1, S_T0)
    srd_off(a, SRD_WG, 60, 61, "s%d" % S_T0, "s%d" % S_T1)
    srd_off(a, SRD_WU, 62, 63, "s%d" % S_T0, "s%d" % S_T1)
    a("s_lshl_b32 s%d, s%d, 19", S_T0, S_HEAD)
    srd_off(a, SRD_K, 64, 65, "s%d" % S_T0, 524288)
    srd_off(a, SRD_V, 66, 67, "s%d" % S_T0, 524288)
    a("s_mul_i32 s%d, s%d, 229376", S_T0, S_TG); a("s_lshl_b32 s%d, s%d, 13", S_T1, S_J)
    a("s_add_u32 s%d, s%d, s%d", S_T0, S_T0, S_T1); a("s_add_u32 s%d, s%d, 0x%x", S_T0, S_T0, WS_H)
    srd_off(a, SRD_H, 4, 5, "s%d" % S_T0, 8192)
    a("s_lshl_b32 s%d, s%d, 19", S_T0, S_TG); a("s_lshl_b32 s%d, s%d, 14", S_T1, S_HEAD)
    a("s_add_u32 s%d, s%d, s%d", S_T0, S_T0, S_T1); a("s_add_u32 s%d, s%d, 0x%x", S_T0, S_T0, WS_O)
    srd_off(a, SRD_O, 4, 5, "s%d" % S_T0, 16384)
    a("v_lshlrev_b32 v%d, 4, v1", V_XN)
    a("v_lshrrev_b32 v2, 4, v1"); a("v_and_b32 v3, 15, v1"); a("v_lshrrev_b32 v4, 2, v3"); a("v_and_b32 v5, 3, v1")
    a("v_and_b32 v6, 1, v2"); a("v_lshrrev_b32 v7, 1, v2")
    a("s_lshl_b32 s%d, s%d, 3", S_T0, S_W)
    a("v_add_u32 v8, s%d, v2", S_T0)
    a("v_lshlrev_b32 v9, 1, v2")
    a("v_xor_b32 v48, v3, v9"); a("v_lshlrev_b32 v48, 4, v48")
    a("v_lshl_add_u32 v%d, v8, 13, v48", V_QD0)
    a("v_xor_b32 v48, 8, v9"); a("v_xor_b32 v48, v3, v48"); a("v_lshlrev_b32 v48, 4, v48")
    a("v_add_u32 v49, 4, v8"); a("v_lshl_add_u32 v%d, v49, 13, v48", V_QD1)
    a("v_subrev_u32 v%d, 1024, v%d", V_QD1, V_QD1)
    a("v_lshrrev_b32 v48, 3, v1"); a("v_add_u32 v48, s%d, v48", S_T0)
    a("s_movk_i32 s%d, 3584", S_T1); a("v_mul_lo_u32 v48, v48, s%d", S_T1)
    a("v_and_b32 v49, 7, v1"); a("v_xor_b32 v49, v49, v9"); a("v_lshl_add_u32 v%d, v49, 4, v48", V_GD)
    a("v_xor_b32 v48, v3, v9"); a("v_lshlrev_b32 v48, 4, v48"); a("v_lshl_add_u32 v%d, v2, 8, v48", V_KVD)
    a("v_xor_b32 v48, 8, v9"); a("v_xor_b32 v48, v3, v48"); a("v_lshlrev_b32 v48, 4, v48"); a("v_lshl_add_u32 v%d, v2, 8, v48", V_KVD + 1)
    a("v_lshl_add_u32 v50, v6, 2, v4")
    a("v_lshlrev_b32 v51, 12, v7"); a("v_lshl_add_u32 v52, v50, 8, v51")
    a("v_lshlrev_b32 v53, 1, v50")
    for ds in range(4):
        a("v_add_u32 v48, %d, v5", 4 * ds); a("v_xor_b32 v48, v48, v53"); a("v_lshl_add_u32 v%d, v48, 4, v52", V_QA + ds)
    a("v_lshl_add_u32 v52, v50, 7, v51"); a("v_add_u32 v52, 2048, v52")
    a("v_and_b32 v48, 1, v5"); a("v_lshl_add_u32 v52, v48, 3, v52")
    a("v_lshrrev_b32 v53, 1, v50"); a("v_lshlrev_b32 v53, 1, v53")
    a("v_lshrrev_b32 v54, 1, v5")
    for gb in range(4):
        a("v_add_u32 v48, %d, v54", 2 * gb); a("v_xor_b32 v48, v48, v53"); a("v_lshl_add_u32 v%d, v48, 4, v52", V_GA + gb)
    a("v_and_b32 v53, 7, v1"); a("v_lshlrev_b32 v53, 1, v53"); a("v_lshlrev_b32 v52, 8, v3")
    for ds in range(4):
        a("v_add_u32 v48, %d, v2", 4 * ds); a("v_xor_b32 v48, v48, v53"); a("v_lshl_add_u32 v%d, v48, 4, v52", V_KA + ds)
    a("v_lshl_add_u32 v52, v2, 2, v4"); a("v_lshlrev_b32 v52, 8, v52")
    a("v_and_b32 v48, 1, v5"); a("v_lshl_add_u32 v52, v48, 3, v52"); a("v_add_u32 v52, 0x10000, v52")
    a("v_lshlrev_b32 v53, 1, v50")
    for db in range(8):
        a("v_add_u32 v48, %d, v54", 2 * db); a("v_xor_b32 v48, v48, v53"); a("v_lshl_add_u32 v%d, v48, 4, v52", V_VA + db)
    a("s_lshl_b32 s%d, s%d, 12", S_WM0, S_W)

def gemm(a):
    vm = VM()
    NK = 16
    def xload(ks):
        L = []
        L.append(("s", "s_mov_b32 s%d, %d" % (S_XOFF, ks * 4096)))
        for tb in range(4):
            r = A_B + 16 * (ks % 3) + 4 * tb
            L.append(("x%d" % ks, "buffer_load_dwordx4 a[%d:%d], v%d, s[%d:%d], s%d offen offset:%d" % (r, r + 3, V_XN, SRD_XN, SRD_XN + 3, S_XOFF, tb * 1024)))
        return L
    def wdma(ks):
        slot = ks % 8
        L = []
        L.append(("s", "s_add_u32 m0, s%d, %d" % (S_WM0, slot * 16384)))
        L.append(("s", "s_mov_b32 s%d, %d" % (S_QOFF, ks * 32 * 8192)))
        L.append(("w%d" % ks, "buffer_load_dwordx4 v%d, s[%d:%d], s%d offen lds" % (V_QD0, SRD_WQ, SRD_WQ + 3, S_QOFF)))
        L.append(("w%d" % ks, "buffer_load_dwordx4 v%d, s[%d:%d], s%d offen offset:1024 lds" % (V_QD1, SRD_WQ, SRD_WQ + 3, S_QOFF)))
        L.append(("s", "s_add_u32 m0, s%d, %d" % (S_WM0, slot * 16384 + 2048)))
        L.append(("s", "s_mov_b32 s%d, %d" % (S_GOFF, ks * 32 * 3584)))
        L.append(("w%d" % ks, "buffer_load_dwordx4 v%d, s[%d:%d], s%d offen lds" % (V_GD, SRD_WG, SRD_WG + 3, S_GOFF)))
        L.append(("s", "s_add_u32 m0, s%d, %d" % (S_WM0, slot * 16384 + 3072)))
        L.append(("s", "s_nop 0"))
        L.append(("w%d" % ks, "buffer_load_dwordx4 v%d, s[%d:%d], s%d offen lds" % (V_GD, SRD_WU, SRD_WU + 3, S_GOFF)))
        return L
    def kvdma(which, srd, soff_expr, m0_expr, tag):
        L = []
        L.append(("s", "s_mov_b32 m0, s%d" % S_T1))
        L.append(("s", "s_add_u32 s%d, s%d, 4096" % (S_T2, S_T0)))
        for i in range(4):
            L.append((tag, "buffer_load_dwordx4 v%d, s[%d:%d], s%d offen offset:%d lds" % (V_KVD + (i & 1), srd, srd + 3, S_T0, i * 1024)))
        L.append(("s", "s_add_u32 m0, s%d, 4096" % S_T1))
        L.append(("s", "s_nop 0"))
        for i in range(4):
            L.append((tag, "buffer_load_dwordx4 v%d, s[%d:%d], s%d offen offset:%d lds" % (V_KVD + (i & 1), srd, srd + 3, S_T2, i * 1024)))
        return L
    def emit(L):
        for tag, s in L:
            a(s)
            if tag != "s": vm.add(tag)
    def aread(ks, cb):
        slot = ks % 8
        hi = slot >= 4
        imm = (slot % 4) * 16384
        r = A_A + 4 * cb
        L = []
        for u in range(2):
            if cb < 8:
                ds, b = cb // 2, cb % 2
                L.append("ds_read_b64_tr_b16 a[%d:%d], v%d offset:%d" % (r + 2 * u, r + 2 * u + 1, V_QA + ds, imm + u * 8192 + b * 8))
            else:
                gb = (cb - 8) % 4; up = (cb - 8) // 4
                L.append("ds_read_b64_tr_b16 a[%d:%d], v%d offset:%d" % (r + 2 * u, r + 2 * u + 1, V_GA + gb, imm + u * 8192 + up * 1024))
        return L
    def toggle_addr():
        return ["v_xor_b32 v%d, 0x10000, v%d" % (r, r) for r in list(range(V_QA, V_QA + 4)) + list(range(V_GA, V_GA + 4))]
    emit(xload(0)); emit(wdma(0)); emit(wdma(1)); emit(xload(1))
    for ks in range(2, 6): emit(wdma(ks))
    a("s_lshl_b32 s%d, s%d, 12", S_T0, S_W)
    a("s_add_u32 m0, s%d, 131072", S_T0)
    a("s_nop 0")
    for i in range(4):
        a("buffer_load_dwordx4 v%d, s[%d:%d], s%d offen offset:%d lds", V_KVD + (i & 1), SRD_K, SRD_K + 3, S_T0, i * 1024); vm.add("k01")
    a("s_waitcnt vmcnt(%d)", vm.wait_for({"w0", "w1", "x0"}))
    a("s_barrier")
    for cb in range(4):
        for l in aread(0, cb): a(l)
    for ks in range(NK):
        pre = {cb: [] for cb in range(16)}
        if ks + 2 < NK: pre[0] += xload(ks + 2)
        if ks % 2 == 0 and ks >= 2:
            k2 = ks + 5
            if k2 < NK: pre[2] += wdma(k2)
            elif ks == 12:
                pass
        out_after_barrier = []
        if ks % 2 == 1:
            k1 = ks + 5
            if k1 < NK: out_after_barrier = wdma(k1)
        att = []
        if ks == 11:
            att += [("s", "s_add_u32 s%d, s%d, 2" % (S_T0, S_W)), ("s", "s_lshl_b32 s%d, s%d, 13" % (S_T0, S_T0)),
                    ("s", "s_lshl_b32 s%d, s%d, 13" % (S_T1, S_W))]
            att += kvdma("K", SRD_K, None, None, "ks0")
        if ks == 15:
            att += [("s", "s_max_u32 s%d, s%d, 1" % (S_T0, S_W)), ("s", "s_sub_u32 s%d, s%d, 1" % (S_T0, S_T0)), ("s", "s_lshl_b32 s%d, s%d, 13" % (S_T0, S_T0)),
                    ("s", "s_lshl_b32 s%d, s%d, 13" % (S_T1, S_W)), ("s", "s_add_u32 s%d, s%d, 0x10000" % (S_T1, S_T1))]
            att += kvdma("V", SRD_V, None, None, "vs0")
        out_after_barrier = out_after_barrier + att
        for cb in range(16):
            if cb == 0:
                a("s_waitcnt vmcnt(%d) lgkmcnt(6)", vm.wait_for({"x%d" % ks}))
            else:
                last = (ks == NK - 1 and cb >= 12)
                a("s_waitcnt lgkmcnt(%d)", 6 if not last else 2 * (15 - cb))
            fill = []
            nxt = cb + 4
            if cb == 12 and ks % 2 == 1:
                if ks + 1 < NK:
                    n = vm.wait_for({"w%d" % (ks + 1), "w%d" % (ks + 2)})
                    a("s_waitcnt vmcnt(%d)", n)
                a("s_barrier")
            if nxt < 16: fill += aread(ks, nxt)
            elif ks + 1 < NK:
                if nxt == 16 and (ks + 1) % 4 == 0: fill += toggle_addr()
                fill += aread(ks + 1, nxt - 16)
            extra = [(t, s) for t, s in pre[cb]]
            if cb >= 12 and ks % 2 == 1:
                n = len(out_after_barrier); q = (n + 3) // 4
                extra += out_after_barrier[(cb - 12) * q:(cb - 11) * q]
            mf = []
            for tb in range(4):
                if cb < 8:
                    d = "v[%d:%d]" % (V_QACC + (cb * 4 + tb) * 4, V_QACC + (cb * 4 + tb) * 4 + 3)
                else:
                    d = "a[%d:%d]" % ((( cb - 8) * 4 + tb) * 4, ((cb - 8) * 4 + tb) * 4 + 3)
                c = "0" if ks == 0 else d
                b = A_B + 16 * (ks % 3) + 4 * tb
                mf.append("%s %s, a[%d:%d], a[%d:%d], %s" % (M, d, A_A + 4 * cb, A_A + 4 * cb + 3, b, b + 3, c))
            items = [("s", f) for f in fill] + extra
            per = (len(items) + 3) // 4
            for t in range(4):
                a(mf[t])
                emit(items[t * per:(t + 1) * per])
    return vm

def gemm_epilogue(a):
    a("s_nop 7")
    a("s_cmp_ge_u32 s%d, 28", S_HEAD); a("s_cbranch_scc1 K12_noh")
    for kk in range(2):
        for tb in range(4):
            t = V_X
            for b in range(2):
                gb = 2 * kk + b
                g = (gb * 4 + tb) * 4; u = 64 + g
                for r in range(4):
                    a("v_accvgpr_read_b32 v%d, a%d", 64 + 8 * b + r, g + r)
                    a("v_accvgpr_read_b32 v%d, a%d", 64 + 8 * b + 4 + r, u + r)
            for b in range(2):
                for r in range(4): a("v_max_f32 v%d, 0, v%d", 64 + 8 * b + r, 64 + 8 * b + r)
                for r in range(4): a("v_mul_f32 v%d, v%d, v%d", 64 + 8 * b + r, 64 + 8 * b + r, 64 + 8 * b + 4 + r)
            o = 80 + 4 * ((kk * 4 + tb) % 4)
            for b in range(2):
                a("v_cvt_pk_bf16_f32 v%d, v%d, v%d", o + 2 * b, 64 + 8 * b, 64 + 8 * b + 1)
                a("v_cvt_pk_bf16_f32 v%d, v%d, v%d", o + 2 * b + 1, 64 + 8 * b + 2, 64 + 8 * b + 3)
            a("s_mov_b32 s%d, %d", S_T0, kk * 4096)
            a("buffer_store_dwordx4 v[%d:%d], v%d, s[%d:%d], s%d offen offset:%d", o, o + 3, V_XN, SRD_H, SRD_H + 3, S_T0, tb * 1024)
    a.label("K12_noh")
    a("s_mov_b32 s%d, 0x3e0293ee", S_C)
    for ds in range(4):
        for qb in range(4):
            for b in range(2):
                s = V_QACC + ((2 * ds + b) * 4 + qb) * 4
                for r in range(4): a("v_mul_f32 v%d, s%d, v%d", s + r, S_C, s + r)
            o = 64 + 4 * ((ds * 4 + qb) % 4)
            for b in range(2):
                s = V_QACC + ((2 * ds + b) * 4 + qb) * 4
                a("v_cvt_pk_bf16_f32 v%d, v%d, v%d", o + 2 * b, s, s + 1)
                a("v_cvt_pk_bf16_f32 v%d, v%d, v%d", o + 2 * b + 1, s + 2, s + 3)
            for i in range(4): a("v_accvgpr_write_b32 a%d, v%d", A_Q + (qb * 4 + ds) * 4 + i, o + i)

def qk_mfmas(sset, first_c):
    L = []
    for kb in range(2):
        for ds in range(4):
            for qb in range(4):
                d = V_S[sset] + (kb * 4 + qb) * 4
                if ds == 0: c = first_c(qb)
                else: c = "v[%d:%d]" % (d, d + 3)
                k = A_K + (kb * 4 + ds) * 4; q = A_Q + (qb * 4 + ds) * 4
                L.append("%s v[%d:%d], a[%d:%d], a[%d:%d], %s" % (M, d, d + 3, k, k + 3, q, q + 3, c))
    return L

def pv_mfmas(pset, order=0):
    L = []
    if order == 0: seq = [(db, qb) for db in range(8) for qb in range(4)]
    else: seq = [(db, qb) for qb in range(4) for db in range(8)]
    for db, qb in seq:
        o = A_O + (db * 4 + qb) * 4; v = A_V + 4 * db; p = V_P[pset] + 4 * qb
        L.append("%s a[%d:%d], a[%d:%d], v[%d:%d], a[%d:%d]" % (M, o, o + 3, v, v + 3, p, p + 3, o, o + 3))
    return L

def kreads(imm, regs=None):
    regs = regs or [V_KA + ds for ds in range(4)]
    return ["ds_read_b128 a[%d:%d], v%d offset:%d" % (A_K + (kb * 4 + ds) * 4, A_K + (kb * 4 + ds) * 4 + 3, regs[ds], imm + kb * 4096) for kb in range(2) for ds in range(4)]

def vreads(imm, regs=None):
    regs = regs or [V_VA + db for db in range(8)]
    return ["ds_read_b64_tr_b16 a[%d:%d], v%d offset:%d" % (A_V + 4 * db + 2 * u, A_V + 4 * db + 2 * u + 1, regs[db], imm + u * 4096) for db in range(8) for u in range(2)]

def softmax_stream(sset, pset):
    L = []
    elems = [(qb, kb, r) for qb in range(4) for kb in range(2) for r in range(4)]
    for i, (qb, kb, r) in enumerate(elems):
        s = V_S[sset] + (kb * 4 + qb) * 4 + r
        t = V_T + (i % 8)
        L.append((2 * i, "v_exp_f32 v%d, v%d" % (t, s)))
        L.append((2 * i + 1 if i % 2 == 0 else 2 * i + 1, "v_add_f32 v%d, v%d, v%d" % (V_L + qb, V_L + qb, t)))
        if i % 2 == 1:
            p = V_P[pset] + 4 * qb + 2 * kb + r // 2
            L.append((2 * i + 1, "v_cvt_pk_bf16_f32 v%d, v%d, v%d" % (p, V_T + ((i - 1) % 8), t)))
    return L

def iteration(a, i, cfg):
    mf = qk_mfmas((i + 1) % 2, lambda qb: "v[%d:%d]" % (V_NEGM + 4 * qb, V_NEGM + 4 * qb + 3)) + pv_mfmas((i + 1) % 2, cfg.get("pv_order", 0))
    slots = [[] for _ in range(64)]
    for k, s in softmax_stream(i % 2, i % 2):
        slots[k].append(s)
    vr = vreads(i * 8192)
    for n, s in enumerate(vr): slots[n + (n // 2)].insert(0, s)
    kr = kreads(i * 8192)
    for n, s in enumerate(kr): slots[33 + 2 * n].insert(0, s)
    dm = cfg["dma"][i]
    pos = [5, 13, 21, 29, 37, 45, 53, 61]
    di = 0
    for grp in dm:
        pre, ins = grp
        for s in pre: slots[pos[di] - 1].append(s)
        slots[pos[di]].append(ins)
        di += 1
    for k in range(64):
        if k == 0: a("s_waitcnt lgkmcnt(0)")
        if k == 32: a("s_waitcnt lgkmcnt(0)")
        a(mf[k])
        for s in slots[k]: a(s)

def tile_dma(srd, soff, soff2, m0):
    G = []
    for i in range(8):
        pre = []
        if i == 0: pre = ["s_mov_b32 m0, s%d" % m0]
        if i == 4: pre = ["s_add_u32 m0, s%d, 4096" % m0]
        G.append((pre, "buffer_load_dwordx4 v%d, s[%d:%d], s%d offen offset:%d lds" % (V_KVD + (i & 1), srd, srd + 3, soff if i < 4 else soff2, (i % 4) * 1024)))
    return G

def attention(a, cfg):
    a("s_waitcnt vmcnt(0)"); a("s_barrier")
    for ds in range(4): a("v_add_u32 v%d, 0x20000, v%d", V_X + ds, V_KA + ds)
    tmp = [V_X + ds for ds in range(4)]
    for s in kreads(0, tmp): a(s)
    for i in range(128): a("v_accvgpr_write_b32 a%d, 0", A_O + i)
    for i in range(4): a("v_mov_b32 v%d, 0", V_L + i)
    for i in range(16): a("v_mov_b32 v%d, 0", V_P[1] + i)
    a("s_waitcnt lgkmcnt(0)")
    for s in qk_mfmas(0, lambda qb: "0"): a(s)
    for s in kreads(8192, tmp): a(s)
    a("s_nop 7")
    mx = [V_X + 8 + qb for qb in range(4)]
    for qb in range(4):
        s0 = V_S[0] + qb * 4; s1 = V_S[0] + (4 + qb) * 4
        a("v_max3_f32 v%d, v%d, v%d, v%d", mx[qb], s0, s0 + 1, s0 + 2)
        a("v_max3_f32 v%d, v%d, v%d, v%d", mx[qb], mx[qb], s0 + 3, s1)
        a("v_max3_f32 v%d, v%d, v%d, v%d", mx[qb], mx[qb], s1 + 1, s1 + 2)
        a("v_max_f32 v%d, v%d, v%d", mx[qb], mx[qb], s1 + 3)
    allreduce_g(a, mx, [V_X + 12 + qb for qb in range(4)], "v_max_f32")
    for qb in range(4):
        for r in range(4): a("v_sub_f32 v%d, 0, v%d", V_NEGM + 4 * qb + r, mx[qb])
    for kb in range(2):
        for qb in range(4):
            for r in range(4):
                s = V_S[0] + (kb * 4 + qb) * 4 + r
                a("v_sub_f32 v%d, v%d, v%d", s, s, mx[qb])
    a("s_add_u32 s%d, s%d, 6", S_KOFF, S_W); a("s_lshl_b32 s%d, s%d, 13", S_KOFF, S_KOFF); a("s_add_u32 s%d, s%d, 4096", S_KOFF2, S_KOFF)
    a("s_add_u32 s%d, s%d, 3", S_VOFF, S_W); a("s_lshl_b32 s%d, s%d, 13", S_VOFF, S_VOFF); a("s_add_u32 s%d, s%d, 4096", S_VOFF2, S_VOFF)
    a("s_lshl_b32 s%d, s%d, 13", S_KM0, S_W); a("s_add_u32 s%d, s%d, 0x8000", S_KM0, S_KM0)
    a("s_add_u32 s%d, s%d, 0x10000", S_VM0, S_KM0)
    a("s_mov_b32 s%d, 0", S_CNT)
    kd = tile_dma(SRD_K, S_KOFF, S_KOFF2, S_KM0); vd = tile_dma(SRD_V, S_VOFF, S_VOFF2, S_VM0)
    cfg = dict(cfg); cfg["dma"] = [kd, vd, [], []]
    a.label("K12_loop")
    for i in range(4): iteration(a, i, cfg)
    for r in list(range(V_KA, V_KA + 4)) + list(range(V_VA, V_VA + 8)): a("v_xor_b32 v%d, 0x8000, v%d", r, r)
    for s in (S_KOFF, S_KOFF2, S_VOFF, S_VOFF2): a("s_add_u32 s%d, s%d, 0x8000", s, s)
    a("s_xor_b32 s%d, s%d, 0x8000", S_KM0, S_KM0); a("s_xor_b32 s%d, s%d, 0x8000", S_VM0, S_VM0)
    a("s_add_u32 s%d, s%d, 1", S_CNT, S_CNT)
    a("s_waitcnt vmcnt(0) lgkmcnt(0)")
    a("s_barrier")
    a("s_cmp_lt_u32 s%d, 16", S_CNT); a("s_cbranch_scc1 K12_loop")
    for s in vreads(0): a(s)
    a("s_waitcnt lgkmcnt(0)")
    for s in pv_mfmas(1, cfg.get("pv_order", 0)): a(s)
    a.label("K12_fin")
    ls = [V_L + qb for qb in range(4)]
    allreduce_g(a, ls, [V_X + qb for qb in range(4)], "v_add_f32")
    a("s_mov_b32 s%d, 0x5f800000", S_T0)
    a("s_mov_b64 s[70:71], 0")
    for qb in range(4):
        a("v_cmp_ngt_f32 vcc, s%d, v%d", S_T0, V_L + qb)
        a("s_nop 0"); a("s_or_b64 s[70:71], s[70:71], vcc")
    for qb in range(4): a("v_rcp_f32 v%d, v%d", V_X + 4 + qb, V_L + qb)
    a("s_nop 7")
    for i in range(4): a("v_mov_b32 v%d, 0x3f803f80", V_X + 8 + i)
    first = True
    for p in range(4):
        for qb in range(4):
            tb_ = 64 + 8 * ((p * 4 + qb) % 2)
            for b in range(2):
                o = A_O + ((2 * p + b) * 4 + qb) * 4
                for r in range(4): a("v_accvgpr_read_b32 v%d, a%d", tb_ + 4 * b + r, o + r)
            for e in range(8): a("v_mul_f32 v%d, v%d, v%d", tb_ + e, tb_ + e, V_X + 4 + qb)
            o = 80 + 4 * ((p * 4 + qb) % 4)
            for e in range(4): a("v_cvt_pk_bf16_f32 v%d, v%d, v%d", o + e, tb_ + 2 * e, tb_ + 2 * e + 1)
            a("s_mov_b32 s%d, %d", S_T1, p * 4096)
            a("buffer_store_dwordx4 v[%d:%d], v%d, s[%d:%d], s%d offen offset:%d", o, o + 3, V_XN, SRD_O, SRD_O + 3, S_T1, qb * 1024)
            a("%s v[96:99], v[%d:%d], v[%d:%d], %s", M, V_X + 8, V_X + 11, o, o + 3, "0" if first else "v[96:99]")
            first = False
    a("s_nop 7")
    a("v_mov_b32 v100, 0x7f800000")
    a("v_cmp_nlt_f32 vcc, abs(v96), v100")
    a("s_nop 0")
    a("s_or_b64 s[70:71], s[70:71], vcc")
    a("s_cmp_eq_u32 s%d, 0", S_REDO); a("s_cbranch_scc0 K12_end")
    a("s_cmp_eq_u64 s[70:71], 0"); a("s_cbranch_scc1 K12_end")
    slow_path(a)

def slow_path(a):
    a("s_mov_b32 s%d, 1", S_REDO)
    a("s_waitcnt vmcnt(0)")
    a("s_lshl_b32 s%d, s%d, 14", S_T2, S_W)
    for ds in range(4):
        a("v_and_b32 v%d, 0xfff, v%d", V_KA + ds, V_KA + ds); a("v_add_u32 v%d, s%d, v%d", V_KA + ds, S_T2, V_KA + ds)
    for db in range(8):
        a("v_and_b32 v%d, 0xfff, v%d", V_VA + db, V_VA + db); a("v_add_u32 v%d, s%d, v%d", V_VA + db, S_T2, V_VA + db)
        a("v_add_u32 v%d, 8192, v%d", V_VA + db, V_VA + db)
    for i in range(128): a("v_accvgpr_write_b32 a%d, 0", A_O + i)
    for i in range(4): a("v_mov_b32 v%d, 0", V_L + i)
    mrun = [V_NEGM + qb for qb in range(4)]
    for qb in range(4): a("v_mov_b32 v%d, 0xff800000", mrun[qb])
    a("s_mov_b32 s%d, 0", S_KOFF); a("s_mov_b32 s%d, 4096", S_KOFF2); a("s_mov_b32 s%d, 0", S_CNT)
    a("s_mov_b32 s%d, s%d", S_KM0, S_T2); a("s_add_u32 s%d, s%d, 8192", S_VM0, S_T2)
    a.label("K12_slow")
    for pre, ins in tile_dma(SRD_K, S_KOFF, S_KOFF2, S_KM0) + tile_dma(SRD_V, S_KOFF, S_KOFF2, S_VM0):
        for s in pre: a(s); a("s_nop 0")
        a(ins)
    a("s_waitcnt vmcnt(0)")
    for s in kreads(0): a(s)
    a("s_waitcnt lgkmcnt(0)")
    for s in vreads(0): a(s)
    for s in qk_mfmas(0, lambda qb: "0"): a(s)
    a("s_nop 7")
    mx = [V_X + 8 + qb for qb in range(4)]
    for qb in range(4):
        s0 = V_S[0] + qb * 4; s1 = V_S[0] + (4 + qb) * 4
        a("v_max3_f32 v%d, v%d, v%d, v%d", mx[qb], s0, s0 + 1, s0 + 2)
        a("v_max3_f32 v%d, v%d, v%d, v%d", mx[qb], mx[qb], s0 + 3, s1)
        a("v_max3_f32 v%d, v%d, v%d, v%d", mx[qb], mx[qb], s1 + 1, s1 + 2)
        a("v_max3_f32 v%d, v%d, v%d, v%d", mx[qb], mx[qb], s1 + 3, mrun[qb])
    allreduce_g(a, mx, [V_X + 12 + qb for qb in range(4)], "v_max_f32")
    al = [V_X + 4 + qb for qb in range(4)]
    for qb in range(4): a("v_sub_f32 v%d, v%d, v%d", al[qb], mrun[qb], mx[qb])
    for qb in range(4): a("v_exp_f32 v%d, v%d", al[qb], al[qb])
    for qb in range(4): a("v_mov_b32 v%d, v%d", mrun[qb], mx[qb])
    for qb in range(4): a("v_mul_f32 v%d, v%d, v%d", V_L + qb, V_L + qb, al[qb])
    for qb in range(4):
        for kb in range(2):
            s0 = V_S[0] + (kb * 4 + qb) * 4
            for r in range(4): a("v_sub_f32 v%d, v%d, v%d", s0 + r, s0 + r, mx[qb])
            for r in range(4): a("v_exp_f32 v%d, v%d", s0 + r, s0 + r)
            a("s_nop 0")
            for r in range(4): a("v_add_f32 v%d, v%d, v%d", V_L + qb, V_L + qb, s0 + r)
            a("v_cvt_pk_bf16_f32 v%d, v%d, v%d", V_P[0] + 4 * qb + 2 * kb, s0, s0 + 1)
            a("v_cvt_pk_bf16_f32 v%d, v%d, v%d", V_P[0] + 4 * qb + 2 * kb + 1, s0 + 2, s0 + 3)
    for db in range(8):
        for qb in range(4):
            o = A_O + (db * 4 + qb) * 4
            for r in range(4): a("v_accvgpr_read_b32 v%d, a%d", V_T + r, o + r)
            for r in range(4): a("v_mul_f32 v%d, v%d, v%d", V_T + r, V_T + r, al[qb])
            for r in range(4): a("v_accvgpr_write_b32 a%d, v%d", o + r, V_T + r)
    a("s_waitcnt lgkmcnt(0)")
    a("s_nop 1")
    for s in pv_mfmas(0): a(s)
    a("s_add_u32 s%d, s%d, 8192", S_KOFF, S_KOFF); a("s_add_u32 s%d, s%d, 8192", S_KOFF2, S_KOFF2)
    a("s_add_u32 s%d, s%d, 1", S_CNT, S_CNT)
    a("s_cmp_lt_u32 s%d, 64", S_CNT); a("s_cbranch_scc1 K12_slow")
    a("s_nop 7")
    a("s_branch K12_fin")

def k12(cfg=None):
    cfg = cfg or {}
    a = Asm()
    setup(a)
    gemm(a)
    gemm_epilogue(a)
    attention(a, cfg)
    a.label("K12_end")
    a("s_endpgm")
    return a.text()
```

```python
from gen_common import *

NO, NH = 32, 14
NS = NO + NH
D = 6
RS = 272
REG = 64 * RS
K3_LDS = 8 * REG

def k3():
    a = Asm()
    M = "v_mfma_f32_16x16x32_bf16"
    a("s_cmp_ge_u32 s2, 256"); a("s_cbranch_scc1 K3_end")
    a("s_load_dwordx2 s[4:5], s[0:1], 88")
    a("s_load_dwordx2 s[6:7], s[0:1], 32")
    a("s_load_dwordx2 s[32:33], s[0:1], 64")
    a("s_load_dwordx2 s[34:35], s[0:1], 0")
    a("s_load_dwordx2 s[36:37], s[0:1], 72")
    a("v_and_b32 v1, 63, v0")
    a("v_lshrrev_b32 v2, 6, v0")
    a("s_and_b32 s40, s2, 7"); a("s_lshl_b32 s40, s40, 2")
    a("s_lshr_b32 s41, s2, 6"); a("s_add_u32 s40, s40, s41")
    a("v_readfirstlane_b32 s3, v2")
    a("s_bfe_u32 s41, s2, 0x30003")
    a("s_lshl_b32 s42, s41, 7")
    a("s_waitcnt lgkmcnt(0)")
    a("s_lshl_b32 s43, s40, 19"); a("s_add_u32 s43, s43, 0x%x", WS_O)
    srd_off(a, 8, 4, 5, "s43", 524288)
    a("s_mul_i32 s43, s40, 229376"); a("s_add_u32 s43, s43, 0x%x", WS_H)
    srd_off(a, 12, 4, 5, "s43", 229376)
    a("s_sub_u32 s43, 0x400000, s42"); srd_off(a, 16, 6, 7, "s42", "s43")
    a("s_sub_u32 s43, 0x1c0000, s42"); srd_off(a, 20, 32, 33, "s42", "s43")
    srd(a, 24, 34, 35, 0x200000)
    srd(a, 28, 36, 37, 0x200000)
    a("v_lshlrev_b32 v3, 4, v1")
    a("v_lshrrev_b32 v4, 3, v1")
    a("v_lshrrev_b32 v5, 4, v1")
    a("v_and_b32 v6, 7, v1")
    a("v_lshlrev_b32 v7, 1, v5"); a("v_xor_b32 v6, v6, v7")
    a("v_lshlrev_b32 v6, 4, v6"); a("v_lshl_add_u32 v8, v4, 10, v6")
    for i in range(1, 4): a("v_add_u32 v%d, %d, v8", 8 + i, i * 7168)
    a("v_and_b32 v16, 15, v1")
    a("v_lshrrev_b32 v17, 2, v16")
    a("v_and_b32 v18, 3, v16")
    a("v_and_b32 v19, 1, v5")
    a("v_lshl_add_u32 v20, v19, 2, v17")
    a("v_lshrrev_b32 v21, 1, v20"); a("v_lshlrev_b32 v21, 1, v21")
    a("v_lshrrev_b32 v22, 1, v5"); a("v_lshlrev_b32 v22, 10, v22")
    a("v_lshl_add_u32 v22, v20, 7, v22")
    a("v_and_b32 v23, 1, v18"); a("v_lshl_add_u32 v22, v23, 3, v22")
    a("s_lshl_b32 s44, s3, 15")
    a("v_add_u32 v22, s44, v22")
    a("v_lshrrev_b32 v23, 1, v18")
    for nb in range(4):
        a("v_add_u32 v24, %d, v23", 2 * nb); a("v_xor_b32 v24, v24, v21")
        a("v_lshl_add_u32 v%d, v24, 4, v22", 12 + nb)
    a("s_lshl_b32 s45, s3, 17")
    a("s_lshl_b32 s46, s3, 20")
    a("s_mul_i32 s47, s3, %d", NH * 4096)
    a("s_mul_i32 s48, s3, %d", NH * 32768)
    BSET = lambda x: 16 * (x % 8)
    ASET = lambda x: 32 + 16 * (x % 2)
    ACC = lambda x: 128 if x < NO else 192
    def issue(x):
        if x >= NS: return []
        L = []
        if x < NO: sb, sa, rb, ra = 45, 46, 8, 16
        else: sb, sa, rb, ra = 47, 48, 12, 20
        for tb in range(4):
            L.append("buffer_load_dwordx4 a[%d:%d], v3, s[%d:%d], s%d offen offset:%d" % (BSET(x) + 4 * tb, BSET(x) + 4 * tb + 3, rb, rb + 3, sb, tb * 1024))
        L.append("s_add_u32 s%d, s%d, 4096" % (sb, sb))
        L.append("s_add_u32 m0, s44, %d" % ((x % 8) * 4096))
        L.append("s_nop 0")
        for i in range(4):
            L.append("buffer_load_dwordx4 v%d, s[%d:%d], s%d offen offset:%d lds" % (8 + i, ra, ra + 3, sa, i * 1024))
        L.append("s_add_u32 s%d, s%d, 32768" % (sa, sa))
        return L
    def areads(x):
        if x >= NS: return []
        L = []
        for nb in range(4):
            for u in range(2):
                r = ASET(x) + 4 * nb + 2 * u
                L.append("ds_read_b64_tr_b16 v[%d:%d], v%d offset:%d" % (r, r + 1, 12 + nb, (x % 8) * 4096 + u * 2048))
        return L
    for x in range(D):
        for l in issue(x): a(l)
    a("s_waitcnt vmcnt(%d)", 8 * (D - 1))
    for l in areads(0): a(l)
    for x in range(NS):
        iss = issue(x + D)
        later = len([y for y in range(x + 2, x + D + 1) if y < NS])
        mf = []
        for nb in range(4):
            for tb in range(4):
                d = ACC(x) + (tb * 4 + nb) * 4
                first = (x == 0 or x == NO)
                c = "0" if first else "a[%d:%d]" % (d, d + 3)
                mf.append("%s a[%d:%d], v[%d:%d], a[%d:%d], %s" % (M, d, d + 3, ASET(x) + 4 * nb, ASET(x) + 4 * nb + 3, BSET(x) + 4 * tb, BSET(x) + 4 * tb + 3, c))
        for l in iss: a(l)
        if x + 1 < NS:
            a("s_waitcnt vmcnt(%d)", 8 * later)
            rd = areads(x + 1)
            for l in rd: a(l)
            a("s_waitcnt lgkmcnt(8)")
        else:
            a("s_waitcnt lgkmcnt(0)")
        for l in mf: a(l)
    a("s_barrier")
    a("v_and_b32 v16, 15, v1")
    a("v_mul_u32_u24 v16, %d, v16", RS)
    a("v_lshl_add_u32 v16, v5, 4, v16")
    a("s_mul_i32 s44, s3, %d", 2 * REG)
    a("v_add_u32 v16, s44, v16")
    a("s_nop 7")
    for mat in range(2):
        for tb in range(4):
            for nb in range(4):
                d = 128 + 64 * mat + (tb * 4 + nb) * 4
                a("ds_write_b128 v16, a[%d:%d] offset:%d", d, d + 3, mat * REG + tb * 16 * RS + nb * 64)
    a("v_lshrrev_b32 v17, 2, v0"); a("v_and_b32 v18, 3, v0")
    a("s_lshl_b32 s43, s40, 16"); a("s_add_u32 s43, s43, s42")
    a("v_lshlrev_b32 v19, 10, v17"); a("v_lshl_add_u32 v19, v18, 5, v19"); a("v_add_u32 v19, s43, v19")
    a("buffer_load_dwordx4 v[20:23], v19, s[24:27], 0 offen")
    a("buffer_load_dwordx4 v[24:27], v19, s[24:27], 0 offen offset:16")
    a("v_mul_u32_u24 v28, %d, v17", RS); a("v_lshl_add_u32 v28, v18, 6, v28")
    a("v_add_u32 v29, %d, v28", 4 * REG)
    a("s_waitcnt lgkmcnt(0)"); a("s_barrier")
    for mat in range(2):
        for w in range(4):
            base = 28 if w < 2 else 29
            for q in range(4):
                r = 32 + mat * 64 + w * 16 + q * 4
                a("ds_read_b128 v[%d:%d], v%d offset:%d", r, r + 3, base, (w % 2) * 2 * REG + mat * REG + q * 16)
        if mat == 0: pass
    a("s_waitcnt lgkmcnt(0)")
    for mat in range(2):
        b = 32 + mat * 64
        for i in range(16):
            a("v_add_f32 v%d, v%d, v%d", b + i, b + i, b + 16 + i)
            a("v_add_f32 v%d, v%d, v%d", b + 32 + i, b + 32 + i, b + 48 + i)
        for i in range(16):
            a("v_add_f32 v%d, v%d, v%d", b + i, b + i, b + 32 + i)
    for i in range(8):
        a("v_cvt_pk_bf16_f32 v%d, v%d, v%d", 48 + i, 32 + 2 * i, 33 + 2 * i)
        a("v_cvt_pk_bf16_f32 v%d, v%d, v%d", 56 + i, 96 + 2 * i, 97 + 2 * i)
    for i in range(8):
        a("v_lshlrev_b32 v%d, 16, v%d", 32 + 2 * i, 48 + i); a("v_and_b32 v%d, 0xffff0000, v%d", 33 + 2 * i, 48 + i)
        a("v_lshlrev_b32 v%d, 16, v%d", 96 + 2 * i, 56 + i); a("v_and_b32 v%d, 0xffff0000, v%d", 97 + 2 * i, 56 + i)
    a("s_mov_b32 s49, 0xbfb8aa3b")
    for i in range(16): a("v_mul_f32 v%d, s49, v%d", 64 + i, 96 + i)
    for i in range(16): a("v_exp_f32 v%d, v%d", 64 + i, 64 + i)
    for i in range(16): a("v_add_f32 v%d, 1.0, v%d", 64 + i, 64 + i)
    for i in range(16): a("v_rcp_f32 v%d, v%d", 64 + i, 64 + i)
    for i in range(16): a("v_mul_f32 v%d, v%d, v%d", 64 + i, 64 + i, 96 + i)
    for i in range(8): a("v_cvt_pk_bf16_f32 v%d, v%d, v%d", 56 + i, 64 + 2 * i, 65 + 2 * i)
    for i in range(8):
        a("v_lshlrev_b32 v%d, 16, v%d", 64 + 2 * i, 56 + i); a("v_and_b32 v%d, 0xffff0000, v%d", 65 + 2 * i, 56 + i)
    for i in range(16): a("v_mul_f32 v%d, v%d, v%d", 64 + i, 64 + i, 32 + i)
    for i in range(8): a("v_cvt_pk_bf16_f32 v%d, v%d, v%d", 56 + i, 64 + 2 * i, 65 + 2 * i)
    a("s_waitcnt vmcnt(0)")
    for i in range(8):
        a("v_lshlrev_b32 v%d, 16, v%d", 64 + 2 * i, 56 + i); a("v_and_b32 v%d, 0xffff0000, v%d", 65 + 2 * i, 56 + i)
        a("v_lshlrev_b32 v%d, 16, v%d", 32 + 2 * i, 20 + i); a("v_and_b32 v%d, 0xffff0000, v%d", 33 + 2 * i, 20 + i)
    for i in range(16): a("v_add_f32 v%d, v%d, v%d", 64 + i, 64 + i, 32 + i)
    for i in range(8): a("v_cvt_pk_bf16_f32 v%d, v%d, v%d", 56 + i, 64 + 2 * i, 65 + 2 * i)
    a("buffer_store_dwordx4 v[56:59], v19, s[28:31], 0 offen")
    a("buffer_store_dwordx4 v[60:63], v19, s[28:31], 0 offen offset:16")
    a.label("K3_end")
    a("s_endpgm")
    return a.text()
```

```python
HDR = "recurrent_scan__mha_block_cached__glu_gated_reglu__prompt"
class Asm:
    def __init__(self):
        self.lines = []
    def __call__(self, s, *a):
        self.lines.append("    " + (s % a if a else s))
    def label(self, s):
        self.lines.append(s + ":")
    def raw(self, s):
        self.lines.append(s)
    def text(self):
        return "\n".join(self.lines) + "\n"

def kernel_begin(name):
    return (".globl %s\n.p2align 8\n.type %s,@function\n%s:\n" % (name, name, name))

def kernel_desc(name, vgpr=512, sgpr=102, accum=256):
    return (""".amdhsa_kernel %s
  .amdhsa_next_free_vgpr %d
  .amdhsa_next_free_sgpr %d
  .amdhsa_accum_offset %d
  .amdhsa_group_segment_fixed_size 0
  .amdhsa_kernarg_size 96
  .amdhsa_user_sgpr_count 2
  .amdhsa_user_sgpr_kernarg_segment_ptr 1
  .amdhsa_system_sgpr_workgroup_id_x 1
.end_amdhsa_kernel
""" % (name, vgpr, sgpr, accum))

def single_file(body, grid, block, lds, vgpr=512, sgpr=102, accum=256, name=HDR + "_kernel"):
    s = "; @launch grid=(%d,1,1) block=(%d,1,1) lds=%d\n" % (grid, block, lds)
    s += '.amdgcn_target "amdgcn-amd-amdhsa--gfx950"\n.text\n'
    s += kernel_begin(name) + body + "\n.section .rodata,\"a\"\n.p2align 6\n" + kernel_desc(name, vgpr, sgpr, accum)
    return s
```

```python
import re, sys

def regs(tok):
    tok = tok.strip().lstrip('-').replace('|', '')
    m = re.fullmatch(r'abs\((.*)\)', tok)
    if m: tok = m.group(1)
    m = re.fullmatch(r'([vas])\[(\d+):(\d+)\]', tok)
    if m: return [(m.group(1), i) for i in range(int(m.group(2)), int(m.group(3)) + 1)]
    m = re.fullmatch(r'([vas])(\d+)', tok)
    if m: return [(m.group(1), int(m.group(2)))]
    if tok == 'vcc': return [('s', 'vcc')]
    if tok == 'exec': return [('s', 'exec')]
    if tok == 'm0': return [('s', 'm0')]
    return []

TRANS = ('v_exp_f32', 'v_log_f32', 'v_rcp_f32', 'v_rsq_f32', 'v_sqrt_f32', 'v_sin_f32', 'v_cos_f32')

class I:
    def __init__(self, line, n):
        self.line = line.strip(); self.n = n
        s = self.line.split(';')[0].strip()
        parts = s.split(None, 1)
        self.op = parts[0]
        rest = parts[1] if len(parts) > 1 else ''
        ops = [o.strip() for o in rest.split(',')] if rest else []
        if ops:
            last = ops[-1].split()
            ops[-1] = last[0] if last else ''
            self.mods = ' '.join(last[1:])
        else: self.mods = ''
        self.ops = ops
        op = self.op
        self.is_mfma = op.startswith('v_mfma')
        self.is_valu = op.startswith('v_') and not self.is_mfma
        self.is_trans = any(op.startswith(t) for t in TRANS)
        self.is_ds = op.startswith('ds_')
        self.is_vmem = op.startswith('buffer_') or op.startswith('global_')
        self.is_salu = op.startswith('s_')
        self.is_dpp = 'quad_perm' in rest or 'row_' in rest or op.endswith('_dpp')
        self.is_perm = op.startswith('v_permlane')
        self.is_lds_dma = self.is_vmem and (' lds' in (' ' + rest) or 'load_lds' in op)
        w, r = [], []
        R = [regs(o) for o in ops]
        if self.is_mfma:
            w = R[0]; self.A = R[1]; self.B = R[2]; self.C = R[3] if len(R) > 3 else []
            r = self.A + self.B + self.C
            self.passes = 8 if '32x32' in op else 4
        elif self.is_valu:
            if op.startswith('v_cmp'):
                w = R[0]; r = sum(R[1:], [])
                if op.startswith('v_cmpx'): w = w + [('s', 'exec')]
            elif op.startswith('v_readfirstlane') or op.startswith('v_readlane'):
                w = R[0]; r = sum(R[1:], [])
            elif self.is_perm:
                w = R[0] + R[1]; r = R[0] + R[1]
            elif op.startswith('v_add_co') or op.startswith('v_addc_co') or op.startswith('v_sub_co') or op.startswith('v_div_scale') or op.startswith('v_mad_u64'):
                w = R[0] + R[1]; r = sum(R[2:], [])
            else:
                w = R[0]; r = sum(R[1:], [])
                if op.startswith('v_fmac') or op.startswith('v_dot2c') or op.startswith('v_writelane') or self.is_dpp: r = r + R[0]
                if op.startswith('v_cndmask') and len(R) == 3: r = r + [('s', 'vcc')]
        elif self.is_ds:
            if op.startswith('ds_read') or op.startswith('ds_bpermute') or op.startswith('ds_swizzle') or op.startswith('ds_permute'):
                w = R[0]; r = sum(R[1:], [])
            else: r = sum(R, [])
        elif self.is_vmem:
            if self.is_lds_dma: r = sum(R, []) + [('s', 'm0')]
            elif 'load' in op: w = R[0]; r = sum(R[1:], [])
            elif 'atomic' in op: r = sum(R, [])
            else: r = sum(R, [])
            self.store_data = R[0] if ('store' in op and op.startswith('buffer_')) else (R[1] if 'store' in op else [])
            self.wide = 'x4' in op or 'x3' in op
        elif self.is_salu:
            if op.startswith('s_cmp') or op.startswith('s_cbranch') or op in ('s_waitcnt', 's_barrier', 's_nop', 's_branch', 's_endpgm', 's_setprio', 's_sleep'):
                r = sum(R, [])
            else:
                w = R[0] if R else []; r = sum(R[1:], [])
                if 'saveexec' in op: w = w + [('s', 'exec')]
        self.w = set(w); self.r = set(r)
        self.states = 1
        if op == 's_nop': self.states = int(ops[0], 0) + 1

def check(text, verbose=True):
    lines = text.split('\n')
    ins = []; labels = {}
    for n, l in enumerate(lines, 1):
        s = l.split(';')[0].strip()
        if not s or s.startswith('.'): continue
        if s.endswith(':'): labels[s[:-1]] = len(ins); continue
        if re.match(r'^[A-Za-z_.$][\w.$]*:', s): continue
        ins.append(I(s, n))
    probs = []
    def scan(seq):
        for j, c in enumerate(seq):
            dist = 0
            for i in range(j - 1, max(-1, j - 24), -1):
                p = seq[i]
                need = 0; why = ''
                if p.op in ('s_branch', 's_endpgm') and p is not c and seq[i + 1].n != p.n + 0 and getattr(p, 'stop', False): break
                vw = {x for x in p.w if x[0] in 'va'}
                sw = {x for x in p.w if x[0] == 's'}
                if p.is_valu and vw:
                    if c.is_mfma and vw & c.r: need, why = 2, 'VALU->MFMA operand'
                    if c.is_valu and c.is_dpp and vw & c.r: need, why = max(need, 2), 'VALU->DPP'
                    if c.is_perm and vw & c.r: need, why = max(need, 2), 'VALU->permlane'
                    if (c.op.startswith('v_readfirstlane') or c.op.startswith('v_readlane')) and vw & c.r: need, why = max(need, 1), 'VALU->readlane'
                    if p.is_trans and c.is_valu and not c.is_trans and vw & c.r: need, why = max(need, 1), 'trans->VALU'
                    if p.is_trans and c.is_valu and c.is_trans and vw & c.r: need, why = max(need, 1), 'trans->trans(pad)'
                if p.is_valu and sw:
                    if c.is_valu and sw & c.r: need, why = max(need, 2), 'VALU sgpr->VALU'
                    if c.is_vmem and sw & c.r: need, why = max(need, 5), 'VALU sgpr->VMEM'
                    if c.is_salu and sw & c.r and not c.op.startswith('s_cbranch'): need, why = max(need, 1), 'VALU sgpr->SALU(pad)'
                    if c.op.startswith('s_cbranch_vcc') and ('s', 'vcc') in sw: need, why = max(need, 1), 'vcc->cbranch(pad)'
                    if ('s', 'exec') in sw and c.is_mfma: need, why = max(need, 4), 'VALU exec->MFMA'
                if p.is_mfma:
                    n_rd = 8 if p.passes == 4 else 12
                    if c.is_mfma:
                        if p.w & set(c.A + c.B): need, why = max(need, n_rd), 'MFMA D->MFMA A/B'
                        oc = p.w & set(c.C)
                        if oc and not (set(c.C) == p.w and c.passes == p.passes): need, why = max(need, 6 if p.passes == 4 else 10), 'MFMA D->MFMA C partial'
                        if p.w & c.w and not (set(c.C) == p.w): need, why = max(need, 6 if p.passes == 4 else 10), 'MFMA D WAW (pad)'
                    elif c.is_valu or c.is_ds or c.is_vmem:
                        if p.w & (c.r | c.w): need, why = max(need, n_rd), 'MFMA D->VALU/MEM'
                        if c.is_valu and set(p.C) & c.w: need, why = max(need, 3 if p.passes == 4 else 7), 'MFMA C WAR'
                if p.is_salu and ('s', 'm0') in p.w and c.is_lds_dma: need, why = max(need, 1), 'm0->DMA'
                if p.is_vmem and getattr(p, 'wide', False) and getattr(p, 'store_data', None) and set(p.store_data) & c.w and (c.is_valu or c.is_ds or c.is_vmem):
                    need, why = max(need, 2), 'store data WAR'
                if need > dist:
                    probs.append((p.n, c.n, why, need, dist, p.line, c.line))
                dist += p.states
                if dist >= 20: break
    scan(ins)
    for j, c in enumerate(ins):
        if c.op.startswith('s_cbranch') or c.op == 's_branch':
            t = c.ops[0]
            if t in labels:
                k = labels[t]
                seq = ins[max(0, j - 24):j + 1] + ins[k:k + 24]
                scan(seq)
    seen = set(); out = []
    for p in probs:
        if (p[0], p[1], p[2]) in seen: continue
        seen.add((p[0], p[1], p[2])); out.append(p)
    if verbose:
        for p in out[:60]: print("HAZARD %s need %d have %d\n   L%d %s\n   L%d %s" % (p[2], p[3], p[4], p[0], p[5], p[1], p[6]))
        print("hazard check: %d instrs, %d problems" % (len(ins), len(out)))
    return out

if __name__ == "__main__":
    check(open(sys.argv[1]).read())
```

```python
import sys
from gen_common import *
import gen_k0, gen_k3, gen_k12, hz
from gl import kernel_begin, kernel_desc

HEADER = open("recurrent_scan__mha_block_cached__glu_gated_reglu__prompt.s.ref").read().split("; Override launch")[0]

def build(cfg=None, kernels=("k0", "k12", "k3")):
    cfg = cfg or {}
    ks = {"k0": (gen_k0.k0, 256, 256, 8320, 48, 48, 32), "k12": (lambda: gen_k12.k12(cfg), 256, 256, gen_k12.K12_LDS, 512, 256, 80), "k3": (gen_k3.k3, 256, 256, gen_k3.K3_LDS, 512, 256, 56)}
    s = HEADER
    for k in kernels:
        s += "; @launch kernel=%s_kernel grid=(%d,1,1) block=(%d,1,1) lds=%d\n" % (k, ks[k][1], ks[k][2], ks[k][3])
    s += '.amdgcn_target "amdgcn-amd-amdhsa--gfx950"\n.text\n'
    for k in kernels:
        t = ks[k][0]()
        print("==", k); hz.check(t)
        s += kernel_begin(k + "_kernel") + t + "\n"
    s += '.section .rodata,"a"\n'
    for k in kernels:
        s += ".p2align 6\n" + kernel_desc(k + "_kernel", ks[k][4], ks[k][6], ks[k][5])
    return s

if __name__ == "__main__":
    out = sys.argv[1] if len(sys.argv) > 1 else "recurrent_scan__mha_block_cached__glu_gated_reglu__prompt.s"
    open(out, "w").write(build())
```

```python
from gl import Asm, kernel_begin, kernel_desc
import hz
HDR = "recurrent_scan__mha_block_cached__glu_gated_reglu__prompt"
M = "v_mfma_f32_16x16x32_bf16"
LDS_BYTES = 149504
LDS_K01 = 131072
LDS_CS = 147456
WS_STATS = 0x0
WS_H = 0x400000
WS_O = 0x1000000
WS_STAMP = 0x4000000
STAMP = {"on": False}

S_W = 3
SRD_X, SRD_WQ, SRD_WG, SRD_WU, SRD_K, SRD_V, SRD_H, SRD_O = 8, 12, 16, 20, 24, 28, 32, 36
SRD_TO, SRD_TH, SRD_TWO, SRD_TWD = 8, 12, 16, 20
S_HEAD, S_QB, S_TG, S_J = 40, 41, 42, 43
S_REDO = 44
S_KOFF, S_KOFF2, S_VOFF, S_VOFF2 = 45, 46, 47, 48
S_KM0, S_VM0 = 49, 50
S_CNT = 51
S_T0, S_T1, S_T2 = 52, 53, 54
S_C = 55
S_WM0 = 56
S_XOFF, S_QOFF, S_GOFF = 57, 58, 59
S_P0 = 60
S_Q25 = 70
S_TGT = 71
SRD_DBG, SRD_ST, SRD_XF, SRD_OUT = 72, 76, 80, 84
S_NGT = 88
S_TB0, S_TB1, S_TA0, S_TA1, S_TM0 = 89, 90, 91, 92, 93
S_BAD = 94
V_STAMP = 9
V_L16 = 10
V_XB = 11
V_QD0, V_QD1, V_GD = 15, 16, 17
V_QA = 18
V_GA = 22
V_CSA = 26
V_KA = 34
V_VA = 38
V_KVD = 46
V_L = 48
V_T = 52
V_X = 60
V_S = [76, 108]
V_NEGM = 140
V_P = [156, 172]
V_LM = 188
V_ONES = 204
V_QACC = 128
V_CSACC = 112
V_ST = 96
V_GONES = 104
A_O = 0
A_Q = 128
A_K = 192
A_V = 224
A_B = 128
A_A = 192
A_CS = 224

def srd(a, d, lo, hi, size):
    a("s_mov_b32 s%d, s%d", d, lo)
    a("s_and_b32 s%d, s%d, 0xffff", d + 1, hi)
    a("s_mov_b32 s%d, 0x%x", d + 2, size)
    a("s_mov_b32 s%d, 0x20000", d + 3)

def srd_off(a, d, lo, hi, off, size):
    o = off if isinstance(off, str) else "0x%x" % off
    a("s_add_u32 s%d, s%d, %s", d, lo, o)
    a("s_addc_u32 s%d, s%d, 0", d + 1, hi)
    a("s_and_b32 s%d, s%d, 0xffff", d + 1, d + 1)
    if isinstance(size, str): a("s_mov_b32 s%d, %s", d + 2, size)
    else: a("s_mov_b32 s%d, 0x%x", d + 2, size)
    a("s_mov_b32 s%d, 0x20000", d + 3)

def allreduce_g(a, vs, tmp, op="v_add_f32"):
    for sw in ("v_permlane16_swap_b32", "v_permlane32_swap_b32"):
        for v, t in zip(vs, tmp): a("v_mov_b32 v%d, v%d", t, v)
        a("s_nop 1")
        for v, t in zip(vs, tmp): a("%s v%d, v%d", sw, v, t)
        a("s_nop 1")
        for v, t in zip(vs, tmp): a("%s v%d, v%d, v%d", op, v, v, t)

def allreduce_rows(a, vs, tmp, op="v_add_f32"):
    for ctl in ("quad_perm:[1,0,3,2]", "quad_perm:[2,3,0,1]", "row_half_mirror", "row_mirror"):
        a("s_nop 1")
        for v in vs: a("%s_dpp v%d, v%d, v%d %s row_mask:0xf bank_mask:0xf", op, v, v, v, ctl)
    allreduce_g(a, vs, tmp, op)

def stamp(a, idx):
    if not STAMP["on"]: return
    a("s_memrealtime s[96:97]"); a("s_memtime s[98:99]"); a("s_waitcnt lgkmcnt(0)")
    a("v_writelane_b32 v%d, s96, %d", V_STAMP, idx); a("v_writelane_b32 v%d, s98, %d", V_STAMP, 8 + idx)

def stamp_flush(a):
    if not STAMP["on"]: return
    a("s_waitcnt vmcnt(0) lgkmcnt(0)")
    srd_off(a, 8, 4, 5, WS_STAMP + 65536, 65536)
    a("s_lshl_b32 s96, s2, 2"); a("s_add_u32 s96, s96, s%d", S_W); a("s_lshl_b32 s96, s96, 6")
    a("v_and_b32 v2, 63, v0"); a("v_lshlrev_b32 v2, 2, v2"); a("v_add_u32 v2, s96, v2")
    a("s_mov_b64 exec, 0xffff")
    a("buffer_store_dword v%d, v2, s[8:11], 0 offen", V_STAMP)
    a("s_waitcnt vmcnt(0)")

class VM:
    def __init__(self): self.ops = []
    def add(self, tag): self.ops.append(tag)
    def wait_for(self, tags):
        idx = max(i for i, t in enumerate(self.ops) if t in tags)
        return min(63, len(self.ops) - 1 - idx)

def poll(a, name, byte_off_sgpr_expr, target):
    a("s_mov_b32 s97, 0")
    a.label(name)
    a("buffer_load_dword v3, v2, s[%d:%d], 0 offen sc1", SRD_DBG, SRD_DBG + 3)
    a("s_waitcnt vmcnt(0)")
    a("v_readfirstlane_b32 s96, v3")
    a("s_add_u32 s97, s97, 1")
    a("s_nop 3")
    a("s_cmp_ge_u32 s96, %d", target)
    a("s_cbranch_scc1 %s_ok", name)
    a("s_cmp_ge_u32 s97, 20000")
    a("s_cbranch_scc1 %s_ok", name)
    a("s_sleep 8")
    a("s_branch %s", name)
    a.label(name + "_ok")

def signal(a, off_vreg, only_wave0=True, label=None):
    a("s_cmp_eq_u32 s%d, 0", S_W); a("s_cbranch_scc0 %s", label)
    a("s_mov_b64 s[96:97], exec"); a("s_mov_b64 exec, 1")
    a("v_mov_b32 v3, 1")
    a("buffer_atomic_add v3, v%d, s[%d:%d], 0 offen sc1", off_vreg, SRD_DBG, SRD_DBG + 3)
    a("s_mov_b64 exec, s[96:97]")
    a.label(label)

def code_prefetch(a, tag, start, end, dst, vtmp, stmp):
    a("s_getpc_b64 s[%d:%d]", stmp, stmp + 1)
    a.label("KF_pc_" + tag)
    a("s_add_u32 s%d, s%d, %s-KF_pc_%s", stmp, stmp, start, tag); a("s_addc_u32 s%d, s%d, %s", stmp + 1, stmp + 1, "0" if tag != "a" else "-1")
    a("s_lshr_b32 s%d, s2, 3", stmp + 2); a("s_lshl_b32 s%d, s%d, 12", stmp + 2, stmp + 2)
    a("v_lshlrev_b32 v%d, 4, v0", vtmp); a("v_add_u32 v%d, s%d, v%d", vtmp, stmp + 2, vtmp)
    a("v_min_u32 v%d, %s-%s-16, v%d", vtmp, end, start, vtmp)
    a("global_load_dwordx4 %s, v%d, s[%d:%d]", dst, vtmp, stmp, stmp + 1)

def setup(a, cfg):
    a("s_cmp_ge_u32 s2, 256"); a("s_cbranch_scc1 KF_end")
    if STAMP["on"]: a("v_mov_b32 v%d, 0", V_STAMP)
    stamp(a, 0)
    if cfg.get("cpf", 1): code_prefetch(a, "a", "KF_start", "KF_codeend", "a[240:243]", 2, 96)
    a("s_load_dwordx2 s[4:5], s[0:1], 88")
    a("s_load_dwordx2 s[60:61], s[0:1], 0")
    a("s_load_dwordx2 s[6:7], s[0:1], 24")
    a("s_load_dwordx4 s[64:67], s[0:1], 48")
    a("s_load_dwordx4 s[24:27], s[0:1], 8")
    a("s_load_dwordx2 s[62:63], s[0:1], 80")
    a("s_load_dwordx2 s[68:69], s[0:1], 72")
    a("v_and_b32 v1, 63, v0")
    a("v_lshrrev_b32 v2, 6, v0")
    a("s_and_b32 s%d, s2, 7", S_HEAD); a("s_lshl_b32 s%d, s%d, 2", S_HEAD, S_HEAD)
    a("s_bfe_u32 s%d, s2, 0x20003", S_T0); a("s_add_u32 s%d, s%d, s%d", S_HEAD, S_HEAD, S_T0)
    a("v_readfirstlane_b32 s%d, v2", S_W)
    a("s_lshr_b32 s%d, s2, 5", S_QB)
    a("s_min_u32 s%d, s%d, 27", S_J, S_HEAD)
    a("s_lshl_b32 s%d, s%d, 2", S_TG, S_QB); a("s_add_u32 s%d, s%d, s%d", S_TG, S_TG, S_W)
    a("s_mov_b32 s%d, 0", S_REDO)
    a("s_mov_b32 s%d, 0x3e800000", S_Q25)
    a("v_lshlrev_b32 v%d, 4, v1", V_L16)
    a("s_lshl_b32 s%d, s2, 13", S_T0); a("s_lshl_b32 s%d, s%d, 11", S_T1, S_W); a("s_add_u32 s%d, s%d, s%d", S_T0, S_T0, S_T1)
    a("s_waitcnt lgkmcnt(0)")
    srd(a, SRD_XF, 60, 61, 0x200000)
    a("buffer_load_dwordx4 v[76:79], v%d, s[%d:%d], s%d offen", V_L16, SRD_XF, SRD_XF + 3, S_T0)
    a("buffer_load_dwordx4 v[80:83], v%d, s[%d:%d], s%d offen offset:1024", V_L16, SRD_XF, SRD_XF + 3, S_T0)
    a("s_mov_b32 s30, s26"); a("s_mov_b32 s31, s27")
    a("s_mov_b32 s28, s24"); a("s_mov_b32 s29, s25")
    a("s_lshl_b32 s%d, s%d, 19", S_T0, S_HEAD)
    srd_off(a, SRD_K, 28, 29, "s%d" % S_T0, 524288)
    a("s_add_u32 s28, s30, s%d", S_T0); a("s_addc_u32 s29, s31, 0"); a("s_and_b32 s29, s29, 0xffff")
    a("s_mov_b32 s30, 524288"); a("s_mov_b32 s31, 0x20000")
    a("s_lshl_b32 s%d, s%d, 16", S_T0, S_TG); srd_off(a, SRD_X, 60, 61, "s%d" % S_T0, 65536)
    a("s_lshl_b32 s%d, s%d, 8", S_T0, S_HEAD); a("s_sub_u32 s%d, 0x400000, s%d", S_T1, S_T0)
    srd_off(a, SRD_WQ, 6, 7, "s%d" % S_T0, "s%d" % S_T1)
    a("s_lshl_b32 s%d, s%d, 7", S_T0, S_J); a("s_sub_u32 s%d, 0x1c0000, s%d", S_T1, S_T0)
    srd_off(a, SRD_WG, 64, 65, "s%d" % S_T0, "s%d" % S_T1)
    srd_off(a, SRD_WU, 66, 67, "s%d" % S_T0, "s%d" % S_T1)
    a("s_mul_i32 s%d, s%d, 229376", S_T0, S_TG); a("s_lshl_b32 s%d, s%d, 13", S_T1, S_J)
    a("s_add_u32 s%d, s%d, s%d", S_T0, S_T0, S_T1); a("s_add_u32 s%d, s%d, 0x%x", S_T0, S_T0, WS_H)
    srd_off(a, SRD_H, 4, 5, "s%d" % S_T0, 8192)
    a("s_lshl_b32 s%d, s%d, 19", S_T0, S_TG); a("s_lshl_b32 s%d, s%d, 14", S_T1, S_HEAD)
    a("s_add_u32 s%d, s%d, s%d", S_T0, S_T0, S_T1); a("s_add_u32 s%d, s%d, 0x%x", S_T0, S_T0, WS_O)
    srd_off(a, SRD_O, 4, 5, "s%d" % S_T0, 16384)
    srd(a, SRD_DBG, 62, 63, 256)
    srd_off(a, SRD_ST, 4, 5, WS_STATS, 16384)
    srd(a, SRD_OUT, 68, 69, 0x200000)
    a("v_lshrrev_b32 v2, 4, v1"); a("v_and_b32 v3, 15, v1"); a("v_lshrrev_b32 v4, 2, v3"); a("v_and_b32 v5, 3, v1")
    a("v_and_b32 v6, 1, v2")
    t0, t1, t2, t3, t4 = V_X, V_X + 1, V_X + 2, V_X + 3, V_X + 4
    a("v_lshlrev_b32 v%d, 10, v3", t0); a("v_lshl_add_u32 v%d, v2, 4, v%d", V_XB, t0)
    for tb in range(1, 4): a("v_add_u32 v%d, %d, v%d", V_XB + tb, tb * 16384, V_XB)
    a("s_lshl_b32 s%d, s%d, 3", S_T0, S_W)
    a("s_and_b32 s%d, s%d, 1", S_T1, S_W); a("s_lshl_b32 s%d, s%d, 2", S_T1, S_T1)
    a("v_or_b32 v%d, s%d, v2", t0, S_T1); a("v_lshlrev_b32 v%d, 1, v%d", t0, t0)
    a("v_xor_b32 v%d, v3, v%d", t0, t0); a("v_lshlrev_b32 v%d, 4, v%d", t0, t0)
    a("v_add_u32 v%d, s%d, v2", t1, S_T0)
    a("v_lshl_add_u32 v%d, v%d, 13, v%d", V_QD0, t1, t0)
    a("v_add_u32 v%d, %d, v%d", V_QD1, 4 * 8192 - 1024, V_QD0)
    a("v_lshrrev_b32 v%d, 3, v1", t0); a("v_add_u32 v%d, s%d, v%d", t0, S_T0, t0)
    a("s_movk_i32 s%d, 3584", S_T2); a("v_mul_lo_u32 v%d, v%d, s%d", t0, t0, S_T2)
    a("s_lshr_b32 s%d, s%d, 1", S_T1, S_T1)
    a("v_or_b32 v%d, s%d, v6", t1, S_T1); a("v_lshlrev_b32 v%d, 1, v%d", t1, t1)
    a("v_and_b32 v%d, 7, v1", t2); a("v_xor_b32 v%d, v%d, v%d", t1, t1, t2)
    a("v_lshl_add_u32 v%d, v%d, 4, v%d", V_GD, t1, t0)
    a("v_lshlrev_b32 v%d, 1, v2", t0)
    a("v_xor_b32 v%d, v3, v%d", t1, t0); a("v_lshlrev_b32 v%d, 4, v%d", t1, t1); a("v_lshl_add_u32 v%d, v2, 8, v%d", V_KVD, t1)
    a("v_xor_b32 v%d, 8, v%d", t1, t0); a("v_xor_b32 v%d, v3, v%d", t1, t1); a("v_lshlrev_b32 v%d, 4, v%d", t1, t1); a("v_lshl_add_u32 v%d, v2, 8, v%d", V_KVD + 1, t1)
    a("v_lshl_add_u32 v%d, v6, 2, v4", t0)
    a("v_lshlrev_b32 v%d, 12, v2", t1); a("v_lshl_add_u32 v%d, v4, 8, v%d", t2, t1)
    a("v_lshlrev_b32 v%d, 1, v%d", t3, t0)
    for ds in range(4):
        a("v_add_u32 v%d, %d, v5", t4, 4 * ds); a("v_xor_b32 v%d, v%d, v%d", t4, t4, t3); a("v_lshl_add_u32 v%d, v%d, 4, v%d", V_QA + ds, t4, t2)
    a("v_lshl_add_u32 v%d, v4, 7, v%d", t2, t1); a("v_add_u32 v%d, 2048, v%d", t2, t2)
    a("v_and_b32 v%d, 1, v5", t4); a("v_lshl_add_u32 v%d, v%d, 3, v%d", t2, t4, t2)
    a("v_lshrrev_b32 v%d, 1, v4", t3); a("v_lshl_add_u32 v%d, v6, 1, v%d", t3, t3); a("v_lshlrev_b32 v%d, 1, v%d", t3, t3)
    a("v_lshrrev_b32 v8, 1, v5")
    for gb in range(4):
        a("v_add_u32 v%d, %d, v8", t4, 2 * gb); a("v_xor_b32 v%d, v%d, v%d", t4, t4, t3); a("v_lshl_add_u32 v%d, v%d, 4, v%d", V_GA + gb, t4, t2)
    a("s_cmp_lt_u32 s%d, 2", S_W); a("s_cbranch_scc0 KF_cs_g")
    a("s_cmp_eq_u32 s%d, 0", S_W); a("s_cbranch_scc0 KF_cs_1")
    for i in range(4):
        for u in range(2): a("v_add_u32 v%d, %d, v%d", V_CSA + 2 * i + u, u * 1024 + (i % 2) * 8, V_QA + i // 2)
    a("s_branch KF_cs_done")
    a.label("KF_cs_1")
    for i in range(4):
        for u in range(2): a("v_add_u32 v%d, %d, v%d", V_CSA + 2 * i + u, u * 1024 + (i % 2) * 8, V_QA + 2 + i // 2)
    a("s_branch KF_cs_done")
    a.label("KF_cs_g")
    a("s_sub_u32 s%d, s%d, 2", S_T0, S_W); a("s_lshl_b32 s%d, s%d, 10", S_T0, S_T0)
    for i in range(4):
        for u in range(2):
            a("v_add_u32 v%d, %d, v%d", V_CSA + 2 * i + u, u * 512, V_GA + i); a("v_add_u32 v%d, s%d, v%d", V_CSA + 2 * i + u, S_T0, V_CSA + 2 * i + u)
    a.label("KF_cs_done")
    a("v_and_b32 v%d, 7, v1", t3); a("v_lshlrev_b32 v%d, 1, v%d", t3, t3); a("v_lshlrev_b32 v%d, 8, v3", t2)
    for ds in range(4):
        a("v_add_u32 v%d, %d, v2", t4, 4 * ds); a("v_xor_b32 v%d, v%d, v%d", t4, t4, t3); a("v_lshl_add_u32 v%d, v%d, 4, v%d", V_KA + ds, t4, t2)
    a("v_lshl_add_u32 v%d, v2, 2, v4", t2); a("v_lshlrev_b32 v%d, 8, v%d", t2, t2)
    a("v_and_b32 v%d, 1, v5", t4); a("v_lshl_add_u32 v%d, v%d, 3, v%d", t2, t4, t2); a("v_add_u32 v%d, 0x10000, v%d", t2, t2)
    a("v_lshlrev_b32 v%d, 1, v%d", t3, t0)
    for db in range(8):
        a("v_add_u32 v%d, %d, v8", t4, 2 * db); a("v_xor_b32 v%d, v%d, v%d", t4, t4, t3); a("v_lshl_add_u32 v%d, v%d, 4, v%d", V_VA + db, t4, t2)
    a("s_lshl_b32 s%d, s%d, 12", S_WM0, S_W)
    for i in range(4): a("v_mov_b32 v%d, 0x3f803f80", V_GONES + i)
    a("s_lshl_b32 s%d, s%d, 4", S_T0, S_QB); a("v_mov_b32 v%d, s%d", V_X + 15, S_T0)

def ln_stats(a, vm):
    a("s_waitcnt vmcnt(%d)", vm.wait_for({"ln"}))
    src = (76, 80); dst = (84, 92)
    for tk in range(2):
        for i in range(4):
            a("v_lshlrev_b32 v%d, 16, v%d", dst[tk] + 2 * i, src[tk] + i)
            a("v_and_b32 v%d, 0xffff0000, v%d", dst[tk] + 2 * i + 1, src[tk] + i)
    s0, s1, q0, q1, t0, t1 = 108, 109, 110, 111, 76, 77
    for tk in range(2): a("v_add_f32 v%d, v%d, v%d", s0 + tk, dst[tk], dst[tk] + 1)
    for i in range(2, 8):
        for tk in range(2): a("v_add_f32 v%d, v%d, v%d", s0 + tk, s0 + tk, dst[tk] + i)
    allreduce_rows(a, [s0, s1], [t0, t1])
    a("s_mov_b32 s%d, 0x3b000000", S_T0)
    for tk in range(2): a("v_mul_f32 v%d, s%d, v%d", s0 + tk, S_T0, s0 + tk)
    for i in range(8):
        for tk in range(2): a("v_sub_f32 v%d, v%d, v%d", dst[tk] + i, dst[tk] + i, s0 + tk)
    for tk in range(2): a("v_mul_f32 v%d, v%d, v%d", q0 + tk, dst[tk], dst[tk])
    for i in range(1, 8):
        for tk in range(2): a("v_fmac_f32 v%d, v%d, v%d", q0 + tk, dst[tk] + i, dst[tk] + i)
    allreduce_rows(a, [q0, q1], [t0, t1])
    for tk in range(2): a("v_mul_f32 v%d, s%d, v%d", q0 + tk, S_T0, q0 + tk)
    a("v_cvt_pk_bf16_f32 v78, v%d, v%d", s0, s1); a("v_cvt_pk_bf16_f32 v79, v%d, v%d", q0, q1)
    a("v_lshlrev_b32 v80, 16, v78"); a("v_and_b32 v82, 0xffff0000, v78")
    a("v_lshlrev_b32 v%d, 16, v79", q0); a("v_and_b32 v%d, 0xffff0000, v79", q1)
    a("v_add_f32 v%d, 0x3727c5ac, v%d", q0, q0); a("v_add_f32 v%d, 0x3727c5ac, v%d", q1, q1)
    a("v_cvt_pk_bf16_f32 v79, v%d, v%d", q0, q1)
    a("v_lshlrev_b32 v%d, 16, v79", q0); a("v_and_b32 v%d, 0xffff0000, v79", q1)
    a("v_sqrt_f32 v%d, v%d", q0, q0); a("v_sqrt_f32 v%d, v%d", q1, q1); a("s_nop 0")
    a("v_cvt_pk_bf16_f32 v79, v%d, v%d", q0, q1)
    a("v_lshlrev_b32 v%d, 16, v79", q0); a("v_and_b32 v%d, 0xffff0000, v79", q1)
    a("v_rcp_f32 v81, v%d", q0); a("v_rcp_f32 v83, v%d", q1)
    a("s_lshl_b32 s%d, s2, 6", S_T0); a("s_lshl_b32 s%d, s%d, 4", S_T1, S_W); a("s_add_u32 s%d, s%d, s%d", S_T0, S_T0, S_T1)
    a("v_mov_b32 v84, 0")
    a("s_mov_b64 s[96:97], exec"); a("s_mov_b64 exec, 1")
    a("buffer_store_dwordx4 v[80:83], v84, s[%d:%d], s%d offen sc1", SRD_ST, SRD_ST + 3, S_T0); vm.add("st")
    a("s_mov_b64 exec, s[96:97]")

class Line:
    def __init__(self, a, vm):
        self.a = a; self.vm = vm; self.lds = []
    def lds_op(self, text, tag):
        self.a(text); self.lds.append(tag)
    def lwait(self, tags):
        js = [j for j, t in enumerate(self.lds) if t in tags]
        c = len(self.lds) - 1 - max(js)
        self.a("s_waitcnt lgkmcnt(%d)", min(c, 15))

def gemm(a, vm, cfg):
    NK = 16
    L = Line(a, vm)
    def xload(kp):
        out = []
        for tb in range(4):
            for h in range(2):
                ks = 2 * kp + h
                r = A_B + 16 * (ks % 4) + 4 * tb
                out.append(("x%d" % ks, "buffer_load_dwordx4 a[%d:%d], v%d, s[%d:%d], 0 offen offset:%d" % (r, r + 3, V_XB + tb, SRD_X, SRD_X + 3, ks * 64)))
        return out
    def wdma(ks):
        slot = ks % 8
        return [("s", "s_add_u32 m0, s%d, %d" % (S_WM0, slot * 16384)),
                ("s", "s_mov_b32 s%d, %d" % (S_QOFF, ks * 32 * 8192)),
                ("w%d" % ks, "buffer_load_dwordx4 v%d, s[%d:%d], s%d offen lds" % (V_QD0, SRD_WQ, SRD_WQ + 3, S_QOFF)),
                ("w%d" % ks, "buffer_load_dwordx4 v%d, s[%d:%d], s%d offen offset:1024 lds" % (V_QD1, SRD_WQ, SRD_WQ + 3, S_QOFF)),
                ("s", "s_add_u32 m0, s%d, %d" % (S_WM0, slot * 16384 + 2048)),
                ("s", "s_mov_b32 s%d, %d" % (S_GOFF, ks * 32 * 3584)),
                ("w%d" % ks, "buffer_load_dwordx4 v%d, s[%d:%d], s%d offen lds" % (V_GD, SRD_WG, SRD_WG + 3, S_GOFF)),
                ("s", "s_add_u32 m0, s%d, %d" % (S_WM0, slot * 16384 + 3072)),
                ("s", "s_nop 0"),
                ("w%d" % ks, "buffer_load_dwordx4 v%d, s[%d:%d], s%d offen lds" % (V_GD, SRD_WU, SRD_WU + 3, S_GOFF))]
    def kvdma(srd_, tag):
        o = [("s", "s_mov_b32 m0, s%d" % S_T1), ("s", "s_add_u32 s%d, s%d, 4096" % (S_T2, S_T0))]
        for i in range(4): o.append((tag, "buffer_load_dwordx4 v%d, s[%d:%d], s%d offen offset:%d lds" % (V_KVD + (i & 1), srd_, srd_ + 3, S_T0, i * 1024)))
        o += [("s", "s_add_u32 m0, s%d, 4096" % S_T1), ("s", "s_nop 0")]
        for i in range(4): o.append((tag, "buffer_load_dwordx4 v%d, s[%d:%d], s%d offen offset:%d lds" % (V_KVD + (i & 1), srd_, srd_ + 3, S_T2, i * 1024)))
        return o
    def emit(items):
        for tag, s in items:
            a(s)
            if tag != "s": vm.add(tag)
    def aread(ks, cb):
        imm = (ks % 4) * 16384
        r = A_A + 4 * (cb % 8)
        o = []
        for u in range(2):
            if cb < 8: o.append(("ds_read_b64_tr_b16 a[%d:%d], v%d offset:%d" % (r + 2 * u, r + 2 * u + 1, V_QA + cb // 2, imm + u * 1024 + (cb % 2) * 8), "A%d_%d" % (ks, cb)))
            else: o.append(("ds_read_b64_tr_b16 a[%d:%d], v%d offset:%d" % (r + 2 * u, r + 2 * u + 1, V_GA + (cb - 8) % 4, imm + u * 512 + ((cb - 8) // 4) * 1024), "A%d_%d" % (ks, cb)))
        return o
    def csread(ks, i):
        imm = (ks % 4) * 16384
        return [("ds_read_b64_tr_b16 a[%d:%d], v%d offset:%d" % (A_CS + 4 * i + 2 * u, A_CS + 4 * i + 2 * u + 1, V_CSA + 2 * i + u, imm), "C%d_%d" % (ks, i)) for u in range(2)]
    toggles = ["v_xor_b32 v%d, 0x10000, v%d" % (r, r) for r in list(range(V_QA, V_QA + 4)) + list(range(V_GA, V_GA + 4))]
    cstoggles = ["v_xor_b32 v%d, 0x10000, v%d" % (r, r) for r in range(V_CSA, V_CSA + 8)]
    emit(wdma(0)); emit(xload(0)); emit(wdma(1))
    for ks in range(2, 6): emit(wdma(ks))
    emit(xload(1))
    a("s_lshl_b32 s%d, s%d, 12", S_T0, S_W); a("s_add_u32 m0, s%d, %d", S_T0, LDS_K01); a("s_nop 0")
    for i in range(4):
        a("buffer_load_dwordx4 v%d, s[%d:%d], s%d offen offset:%d lds", V_KVD + (i & 1), SRD_K, SRD_K + 3, S_T0, i * 1024); vm.add("k01")
    ln_stats(a, vm)
    a("s_waitcnt vmcnt(%d)", vm.wait_for({"w0", "w1", "x0", "x1"}))
    a("s_barrier")
    stamp(a, 1)
    for cb in range(4):
        for t, tag in aread(0, cb): L.lds_op(t, tag)
    L.lwait({"A0_0"})
    for ks in range(NK):
        items = {cb: [] for cb in range(17)}
        vm_items = []
        if ks % 2 == 0 and 2 + ks // 2 < 8 and ks // 2 + 2 <= 7: vm_items += xload(ks // 2 + 2) if False else []
        if ks % 2 == 0 and ks >= 2 and ks // 2 + 1 < 8: vm_items += xload(ks // 2 + 1)
        if ks % 2 == 0 and ks >= 2 and ks + 5 < NK: vm_items += wdma(ks + 5)
        after_bar = []
        if ks % 2 == 1 and ks + 5 < NK: after_bar = wdma(ks + 5)
        if ks == 11:
            after_bar += [("s", "s_add_u32 s%d, s%d, 2" % (S_T0, S_W)), ("s", "s_lshl_b32 s%d, s%d, 13" % (S_T0, S_T0)), ("s", "s_lshl_b32 s%d, s%d, 13" % (S_T1, S_W))] + kvdma(SRD_K, "ks0")
        if ks == 15:
            after_bar += [("s", "s_max_u32 s%d, s%d, 1" % (S_T0, S_W)), ("s", "s_sub_u32 s%d, s%d, 1" % (S_T0, S_T0)), ("s", "s_lshl_b32 s%d, s%d, 13" % (S_T0, S_T0)),
                          ("s", "s_lshl_b32 s%d, s%d, 13" % (S_T1, S_W)), ("s", "s_add_u32 s%d, s%d, 0x10000" % (S_T1, S_T1))] + kvdma(SRD_V, "vs0")
        def groups(lst):
            g = []; cur = []
            for it in lst:
                cur.append(it)
                if it[0] != "s": g.append(cur); cur = []
            if cur: g.append(cur)
            return g
        vg = groups(vm_items); ag = groups(after_bar)
        seq = []
        for cb in range(16):
            for tb in range(4):
                if cb < 8: d = "v[%d:%d]" % (V_QACC + (cb * 4 + tb) * 4, V_QACC + (cb * 4 + tb) * 4 + 3)
                else: d = "a[%d:%d]" % (((cb - 8) * 4 + tb) * 4, ((cb - 8) * 4 + tb) * 4 + 3)
                c = "0" if ks == 0 else d
                b = A_B + 16 * (ks % 4) + 4 * tb
                seq.append(["%s %s, a[%d:%d], a[%d:%d], %s" % (M, d, A_A + 4 * (cb % 8), A_A + 4 * (cb % 8) + 3, b, b + 3, c), cb, tb])
        for i in range(4):
            d = "v[%d:%d]" % (V_CSACC + 4 * i, V_CSACC + 4 * i + 3)
            seq.append(["%s %s, a[%d:%d], v[%d:%d], %s" % (M, d, A_CS + 4 * i, A_CS + 4 * i + 3, V_GONES, V_GONES + 3, "0" if ks == 0 else d), 16, i])
        for n, (text, cb, tb) in enumerate(seq):
            a(text)
            if cb < 16 and tb == 3:
                if cb < 15: L.lwait({"A%d_%d" % (ks, cb + 1)})
                else: L.lwait({"C%d_0" % ks})
            if cb == 16 and tb < 3: L.lwait({"C%d_%d" % (ks, tb + 1)})
            if cb == 16 and tb == 3 and ks + 1 < NK:
                L.lwait({"A%d_0" % (ks + 1)})
                a("s_waitcnt vmcnt(%d)", vm.wait_for({"x%d" % (ks + 1)}))
            if cb == 11 and tb == 3 and ks % 2 == 1:
                if ks + 1 < NK: a("s_waitcnt vmcnt(%d)", vm.wait_for({"w%d" % (ks + 1), "w%d" % (ks + 2)} | ({"st"} if ks == 3 else set())))
                a("s_barrier")
                if ks == 3: signal(a, V_X + 15, label="KF_sigx")
            if cb < 16 and tb == 0:
                nxt = cb + 4
                if nxt < 16:
                    for t, tag in aread(ks, nxt): L.lds_op(t, tag)
                elif ks + 1 < NK:
                    if nxt == 16 and (ks + 1) % 4 == 0:
                        pass
                    for t, tag in aread(ks + 1, nxt - 16): L.lds_op(t, tag)
            if cb < 16 and tb == 1 and 4 <= cb < 8:
                for t, tag in csread(ks, cb - 4): L.lds_op(t, tag)
            if cb == 11 and tb == 2 and (ks + 1) % 4 == 0 and ks + 1 < NK:
                for s in toggles: a(s)
            if cb == 9 and tb == 2 and (ks + 1) % 4 == 0 and ks + 1 < NK:
                for s in cstoggles: a(s)
            if cb < 12 and tb == 2 and vg and cb >= 0: emit(vg.pop(0))
            if cb < 12 and tb == 3 and vg and len(vg) > 12 - cb: emit(vg.pop(0))
            if 12 <= cb < 16 and tb in (1, 2, 3) and ag: emit(ag.pop(0))
            if cb == 16 and ag: emit(ag.pop(0))
            if ks == 13 and cb == 2 and tb == 1:
                a("s_lshl_b32 s%d, s%d, 4", S_T2, S_QB); a("v_mov_b32 v%d, s%d", V_X + 14, S_T2)
                a("buffer_load_dword v%d, v%d, s[%d:%d], 0 offen sc1", V_X + 13, V_X + 14, SRD_DBG, SRD_DBG + 3); vm.add("pollx")
            if ks == 14 and cb == 2 and tb == 1:
                a("s_waitcnt vmcnt(%d)", vm.wait_for({"pollx"}))
                a("v_readfirstlane_b32 s96, v%d", V_X + 13); a("s_nop 3")
                a("s_cmp_ge_u32 s96, 32"); a("s_cbranch_scc1 KF_pxA")
                a("v_mov_b32 v2, v%d", V_X + 14)
                poll(a, "KF_px", None, 32)
                a.label("KF_pxA")
                a("s_lshl_b32 s%d, s%d, 9", S_T2, S_TG)
                a("v_and_b32 v%d, 15, v1", V_X + 14); a("v_lshlrev_b32 v%d, 3, v%d", V_X + 14, V_X + 14)
                for tb2 in range(4):
                    a("buffer_load_dwordx2 v[%d:%d], v%d, s[%d:%d], s%d offen offset:%d sc1", V_ST + 2 * tb2, V_ST + 2 * tb2 + 1, V_X + 14, SRD_ST, SRD_ST + 3, S_T2, tb2 * 128); vm.add("stats")
        while vg: emit(vg.pop(0))
        while ag: emit(ag.pop(0))
    return L

def gemm_epilogue(a, vm, cfg):
    stamp(a, 2)
    a("s_nop 7")
    a("v_lshrrev_b32 v2, 4, v1"); a("v_lshlrev_b32 v2, 4, v2")
    a("s_lshl_b32 s%d, s%d, 8", S_T0, S_W); a("s_add_u32 s%d, s%d, %d", S_T0, S_T0, LDS_CS); a("v_add_u32 v3, s%d, v2", S_T0)
    for i in range(4): a("ds_write_b128 v3, v[%d:%d] offset:%d", V_CSACC + 4 * i, V_CSACC + 4 * i + 3, i * 64)
    a("v_add_u32 v3, %d, v2", LDS_CS)
    a("s_waitcnt lgkmcnt(0)"); a("s_barrier")
    a("s_waitcnt vmcnt(%d)", vm.wait_for({"stats"}))
    m = [V_ST + 2 * tb for tb in range(4)]; rs = [V_ST + 2 * tb + 1 for tb in range(4)]
    rsc = [V_X + tb for tb in range(4)]
    a("s_mov_b32 s%d, 0x3e0293ee", S_C)
    for tb in range(4): a("v_mul_f32 v%d, s%d, v%d", rsc[tb], S_C, rs[tb])
    a("s_cmp_ge_u32 s%d, 28", S_HEAD); a("s_cbranch_scc1 KF_noh")
    for gb in range(4):
        a("ds_read_b128 v[%d:%d], v3 offset:%d", 76 + 4 * gb, 79 + 4 * gb, (8 + gb) * 64)
        a("ds_read_b128 v[%d:%d], v3 offset:%d", 112 + 4 * gb, 115 + 4 * gb, (12 + gb) * 64)
    a("s_waitcnt lgkmcnt(0)")
    G, U = 128 - 64, 0
    for kk in range(2):
        for tb in range(4):
            o = 104 + 4 * ((kk * 4 + tb) % 2)
            for b in range(2):
                gb = 2 * kk + b
                g = (gb * 4 + tb) * 4; u = 64 + g
                tg_, tu_ = 64, 68
                for r in range(4):
                    a("v_accvgpr_read_b32 v%d, a%d", tg_ + r, g + r); a("v_accvgpr_read_b32 v%d, a%d", tu_ + r, u + r)
                for r in range(4):
                    a("v_fma_f32 v%d, -v%d, v%d, v%d", tg_ + r, m[tb], 76 + 4 * gb + r, tg_ + r)
                    a("v_fma_f32 v%d, -v%d, v%d, v%d", tu_ + r, m[tb], 112 + 4 * gb + r, tu_ + r)
                for r in range(4):
                    a("v_mul_f32 v%d, v%d, v%d", tg_ + r, tg_ + r, rs[tb]); a("v_mul_f32 v%d, v%d, v%d", tu_ + r, tu_ + r, rs[tb])
                for r in range(4): a("v_max_f32 v%d, 0, v%d", tg_ + r, tg_ + r)
                for r in range(4): a("v_mul_f32 v%d, v%d, v%d", tg_ + r, tg_ + r, tu_ + r)
                a("v_cvt_pk_bf16_f32 v%d, v%d, v%d", o + 2 * b, tg_, tg_ + 1); a("v_cvt_pk_bf16_f32 v%d, v%d, v%d", o + 2 * b + 1, tg_ + 2, tg_ + 3)
            a("s_mov_b32 s%d, %d", S_T0, kk * 4096)
            a("buffer_store_dwordx4 v[%d:%d], v%d, s[%d:%d], s%d offen offset:%d sc1", o, o + 3, V_L16, SRD_H, SRD_H + 3, S_T0, tb * 1024); vm.add("hst")
    a.label("KF_noh")
    for half in range(2):
        for i in range(4): a("ds_read_b128 v[%d:%d], v3 offset:%d", 76 + 4 * i, 79 + 4 * i, (4 * half + i) * 64)
        a("s_waitcnt lgkmcnt(0)")
        for dsl in range(2):
            ds = 2 * half + dsl
            for qb in range(4):
                for b in range(2):
                    s = V_QACC + ((2 * ds + b) * 4 + qb) * 4
                    cs = 76 + 4 * (2 * dsl + b)
                    for r in range(4): a("v_fma_f32 v%d, -v%d, v%d, v%d", s + r, m[qb], cs + r, s + r)
                    for r in range(4): a("v_mul_f32 v%d, v%d, v%d", s + r, s + r, rsc[qb])
                o = 64 + 4 * ((ds * 4 + qb) % 2)
                for b in range(2):
                    s = V_QACC + ((2 * ds + b) * 4 + qb) * 4
                    a("v_cvt_pk_bf16_f32 v%d, v%d, v%d", o + 2 * b, s, s + 1); a("v_cvt_pk_bf16_f32 v%d, v%d, v%d", o + 2 * b + 1, s + 2, s + 3)
                for i in range(4): a("v_accvgpr_write_b32 a%d, v%d", A_Q + (qb * 4 + ds) * 4 + i, o + i)

def qk_mfmas(sset, first_c, order=0):
    L = []; first = {}; last = {}
    if order == 0: seq = [(kb, ds, qb) for kb in range(2) for ds in range(4) for qb in range(4)]
    elif order == 1: seq = [(kb, ds, qb) for ds in range(4) for qb in range(4) for kb in range(2)]
    else: seq = [(kb, ds, qb) for kb in range(2) for qb in range(4) for ds in range(4)]
    for n, (kb, ds, qb) in enumerate(seq):
        d = V_S[sset] + (kb * 4 + qb) * 4
        c = first_c(qb) if ds == 0 else "v[%d:%d]" % (d, d + 3)
        k = A_K + (kb * 4 + ds) * 4; q = A_Q + (qb * 4 + ds) * 4
        L.append("%s v[%d:%d], a[%d:%d], a[%d:%d], %s" % (M, d, d + 3, k, k + 3, q, q + 3, c))
        f = kb * 4 + ds
        first.setdefault(f, n); last[f] = n
    return L, first, last

def pv_mfmas(pset, order=0):
    L = []; first = {}
    seq = [(db, qb) for db in range(8) for qb in range(4)] if order == 0 else [(db, qb) for qb in range(4) for db in range(8)]
    for n, (db, qb) in enumerate(seq):
        o = A_O + (db * 4 + qb) * 4; v = A_V + 4 * db; p = V_P[pset] + 4 * qb
        L.append("%s a[%d:%d], a[%d:%d], v[%d:%d], a[%d:%d]" % (M, o, o + 3, v, v + 3, p, p + 3, o, o + 3))
        first.setdefault(db, n)
    return L, first

def kreads(imm, regs=None):
    regs = regs or [V_KA + ds for ds in range(4)]
    return ["ds_read_b128 a[%d:%d], v%d offset:%d" % (A_K + (kb * 4 + ds) * 4, A_K + (kb * 4 + ds) * 4 + 3, regs[ds], imm + kb * 4096) for kb in range(2) for ds in range(4)]

def vreads(imm, regs=None):
    regs = regs or [V_VA + db for db in range(8)]
    return ["ds_read_b64_tr_b16 a[%d:%d], v%d offset:%d" % (A_V + 4 * db + 2 * u, A_V + 4 * db + 2 * u + 1, regs[db], imm + u * 4096) for db in range(8) for u in range(2)]

def sm_elems(): return [(qb, kb, r) for qb in range(4) for kb in range(2) for r in range(4)]

class Sched:
    def __init__(self, G):
        self.G = G; self.g = [[] for _ in range(2 * G)]; self.load = [0] * G
    def put(self, gap, ins, units): self.g[gap].append((ins, units)); self.load[gap % self.G] += units
    def place(self, ins, units, lo, hi):
        for c in (2, 3, 4, 99):
            for gp in range(lo, hi + 1):
                if self.load[gp % self.G] + units <= c:
                    self.put(gp, ins, units); return gp
        raise Exception("no slot")

def ones_mfma(qb, pset):
    return "%s v[%d:%d], v[%d:%d], v[%d:%d], v[%d:%d]" % (M, V_LM + 4 * qb, V_LM + 4 * qb + 3, V_ONES, V_ONES + 3, V_P[pset] + 4 * qb, V_P[pset] + 4 * qb + 3, V_LM + 4 * qb, V_LM + 4 * qb + 3)

def build_iter(i, cfg, dmas):
    SQ = cfg.get("sq", (2, 3)); lag = cfg.get("lag", 3)
    imm = ((i // 4) % 2) * 32768 + (i % 4) * 8192
    qk = qk_mfmas((i + 1) % 2, lambda qb: "v[%d:%d]" % (V_NEGM + 4 * qb, V_NEGM + 4 * qb + 3), cfg.get("qk_order", 1))
    pv = pv_mfmas((i + 1) % 2, cfg.get("pv_order", 0))
    mf = qk[0] + pv[0] + [ones_mfma(qb, (i + 1) % 2) for qb in SQ]
    G = len(mf); S = Sched(G); el = sm_elems()
    for n, (qb, kb, r) in enumerate(el):
        S.put(2 * n, ("valu", "v_exp_f32 v%d, v%d" % (V_T + n % 8, V_S[i % 2] + (kb * 4 + qb) * 4 + r)), 2)
    need_v = pv[1]; need_k = qk[1]; last_k = qk[2]
    dpos = cfg.get("dpos", [5, 15, 25, 35, 45, 55, 61, 63])
    for n, (pre, ins) in enumerate(dmas): S.put(dpos[n], ("dma", ins, pre), 2)
    flex = []
    vr = vreads(imm); kr = kreads(imm); vlead = cfg.get("vlead", 7)
    for db in range(8):
        for u in range(2): flex.append((32 + need_v[db] - vlead, 1, ("lds", vr[2 * db + u], "V%d" % db)))
    for f in range(8): flex.append((G - 2, last_k[f] + 1, ("lds", kr[f], "K%d" % f)))
    for n, (qb, kb, r) in enumerate(el):
        tt = V_T + n % 8; k = 2 * n + lag
        if qb not in SQ: flex.append((2 * n + 13, k, ("valu", "v_add_f32 v%d, v%d, v%d" % (V_L + qb, V_L + qb, tt))))
        if n % 2 == 1:
            flex.append((2 * n + 13, k, ("valu", "v_cvt_pk_bf16_f32 v%d, v%d, v%d" % (V_P[i % 2] + 4 * qb + 2 * kb + r // 2, V_T + (n - 1) % 8, tt))))
    for dl, lo, it in sorted(flex, key=lambda x: (x[0], x[1])):
        S.place(it, 1, lo, max(dl, lo))
    return mf, S, need_v, need_k

def emit_body(a, cfg, dma_lists):
    its = [build_iter(i, cfg, dma_lists[i]) for i in range(8)]
    seq = []
    for i, (mf, S, need_v, need_k) in enumerate(its):
        G = len(mf)
        for k in range(G):
            needs = [("K%d" % f) for f in range(8) if k < 32 and need_k[f] == k] + [("V%d" % db) for db in range(8) if k >= 32 and 32 + need_v[db] == k]
            seq.append(("mfma", mf[k], needs))
            items = list(its[(i - 1) % 8][1].g[G + k]) + list(S.g[k])
            items = sorted(items, key=lambda it: {"lds": 0, "dma": 0, "valu": 1}[it[0][0]])
            for it, units in items: seq.append((it[0], it[1], it[2] if len(it) > 2 else None))
        if i % 4 == 3: seq.append(("bar", None, None))
    n = len(seq)
    mpos = [p for p, e in enumerate(seq) if e[0] == "mfma"]
    prev_mfma = {mpos[j]: mpos[j - 1] for j in range(len(mpos))}
    wait_at = {}
    for p in mpos:
        if seq[p][2]: wait_at.setdefault(prev_mfma[p], []).extend(seq[p][2])
    lds_idx = []; waits = {}
    for ps in range(2):
        for pos, (kind, text, tag) in enumerate(seq):
            if kind == "mfma" and pos in wait_at:
                w = None
                for need in wait_at[pos]:
                    js = [j for j, t in enumerate(lds_idx) if t == need]
                    if js:
                        c = len(lds_idx) - 1 - js[-1]
                        w = c if w is None else min(w, c)
                if ps == 1: waits[pos] = w
            if kind == "lds": lds_idx.append(tag)
    for pos, (kind, text, tag) in enumerate(seq):
        if kind == "mfma" and pos in wait_at:
            q = pos + 1
            while q < n and seq[q][0] not in ("mfma", "bar"):
                assert not (seq[q][0] == "lds" and seq[q][2] in wait_at[pos]), "read too late"
                q += 1
    for pos, (kind, text, tag) in enumerate(seq):
        if kind == "mfma":
            a(text)
            if pos in waits and waits[pos] is not None: a("s_waitcnt lgkmcnt(%d)", min(waits[pos], 15))
            q = pos + 1
            while q < n and seq[q][0] not in ("mfma", "bar"): q += 1
            if q < n and seq[q][0] == "mfma":
                r = q + 1
                while r < n and seq[r][0] not in ("mfma", "bar"):
                    if seq[r][0] == "dma" and seq[r][2]:
                        for s_ in seq[r][2]: a(s_)
                    r += 1
        elif kind == "bar": cfg["_period_end"](a)
        else:
            if any(text.startswith(d) for d in cfg.get("drop", ())): continue
            a(text)
    mf7, S7 = its[7][0], its[7][1]
    cfg["_spill7"] = [it[0][1] for gp in range(len(mf7), 2 * len(mf7)) for it in S7.g[gp]]

def tile_dma(srd_, soff, soff2, m0):
    G = []
    for i in range(8):
        pre = []
        if i == 0: pre = ["s_mov_b32 m0, s%d" % m0]
        if i == 4: pre = ["s_add_u32 m0, s%d, 4096" % m0]
        G.append((pre, "buffer_load_dwordx4 v%d, s[%d:%d], s%d offen offset:%d lds" % (V_KVD + (i & 1), srd_, srd_ + 3, soff if i < 4 else soff2, (i % 4) * 1024)))
    return G

def attention(a, cfg):
    a("s_waitcnt vmcnt(0)"); a("s_barrier")
    a("s_cmp_ge_u32 s%d, 28", S_HEAD); a("s_cbranch_scc1 KF_sigh")
    a("v_add_u32 v%d, 4, v%d", V_X + 14, V_X + 15)
    signal(a, V_X + 14, label="KF_sigh")
    for ds in range(4): a("v_add_u32 v%d, %d, v%d", V_X + ds, LDS_K01, V_KA + ds)
    tmp = [V_X + ds for ds in range(4)]
    for s in kreads(0, tmp): a(s)
    for i in range(128): a("v_accvgpr_write_b32 a%d, 0", A_O + i)
    for i in range(4): a("v_mov_b32 v%d, 0", V_L + i)
    for i in range(16): a("v_mov_b32 v%d, 0", V_P[1] + i)
    for i in range(8): a("v_mov_b32 v%d, 0", V_T + i)
    for i in range(4): a("v_mov_b32 v%d, 0x3f803f80", V_ONES + i)
    for i in range(16): a("v_mov_b32 v%d, 0", V_LM + i)
    a("s_waitcnt lgkmcnt(0)")
    for s in qk_mfmas(0, lambda qb: "0")[0]: a(s)
    for s in kreads(8192, tmp): a(s)
    a("s_nop 7")
    mx = [V_X + 8 + qb for qb in range(4)]
    for qb in range(4):
        s0 = V_S[0] + qb * 4; s1 = V_S[0] + (4 + qb) * 4
        a("v_max3_f32 v%d, v%d, v%d, v%d", mx[qb], s0, s0 + 1, s0 + 2)
        a("v_max3_f32 v%d, v%d, v%d, v%d", mx[qb], mx[qb], s0 + 3, s1)
        a("v_max3_f32 v%d, v%d, v%d, v%d", mx[qb], mx[qb], s1 + 1, s1 + 2)
        a("v_max_f32 v%d, v%d, v%d", mx[qb], mx[qb], s1 + 3)
    allreduce_g(a, mx, [V_X + 12 + qb for qb in range(4)], "v_max_f32")
    for qb in range(4):
        for r in range(4): a("v_sub_f32 v%d, 0, v%d", V_NEGM + 4 * qb + r, mx[qb])
    for kb in range(2):
        for qb in range(4):
            for r in range(4):
                s = V_S[0] + (kb * 4 + qb) * 4 + r
                a("v_sub_f32 v%d, v%d, v%d", s, s, mx[qb])
    a("s_add_u32 s%d, s%d, 6", S_KOFF, S_W); a("s_lshl_b32 s%d, s%d, 13", S_KOFF, S_KOFF); a("s_add_u32 s%d, s%d, 4096", S_KOFF2, S_KOFF)
    a("s_add_u32 s%d, s%d, 3", S_VOFF, S_W); a("s_lshl_b32 s%d, s%d, 13", S_VOFF, S_VOFF); a("s_add_u32 s%d, s%d, 4096", S_VOFF2, S_VOFF)
    a("s_lshl_b32 s%d, s%d, 13", S_KM0, S_W); a("s_add_u32 s%d, s%d, 0x8000", S_KM0, S_KM0)
    a("s_add_u32 s%d, s%d, 0x10000", S_VM0, S_KM0)
    a("s_mov_b32 s%d, 0", S_CNT)
    SQ = cfg.get("sq", (2, 3))
    kd = tile_dma(SRD_K, S_KOFF, S_KOFF2, S_KM0); vd = tile_dma(SRD_V, S_VOFF, S_VOFF2, S_VM0)
    cfg = dict(cfg)
    allp = kd + vd
    cuts = {"8800": (8, 16, 16), "6550": (6, 11, 16), "none": None}[cfg.get("dma_mode", "6550")]
    per = [[], [], [], []] if cuts is None else [allp[:cuts[0]], allp[cuts[0]:cuts[1]], allp[cuts[1]:cuts[2]], allp[cuts[2]:]]
    def period_end(a):
        for s in (S_KOFF, S_KOFF2, S_VOFF, S_VOFF2): a("s_add_u32 s%d, s%d, 0x8000", s, s)
        a("s_xor_b32 s%d, s%d, 0x8000", S_KM0, S_KM0); a("s_xor_b32 s%d, s%d, 0x8000", S_VM0, S_VM0)
        a("s_add_u32 s%d, s%d, 1", S_CNT, S_CNT)
        a("s_waitcnt vmcnt(0)")
        if not cfg.get("nobar"): a("s_barrier")
        cfg["_pe"] = cfg.get("_pe", 0) + 1
        if cfg["_pe"] == 1 and cfg.get("cpf2", 1):
            a("s_cmp_eq_u32 s%d, %d", S_CNT, cfg.get("cpf2_at", 13)); a("s_cbranch_scc0 KF_nopf")
            code_prefetch(a, "t", "KF_tailcode", "KF_codeend", "v[208:211]", 2, 96)
            a.label("KF_nopf")
    cfg["_period_end"] = period_end
    if cfg.get("wpf", 1):
        a("s_lshl_b32 s%d, s2, 14", S_T0); a("s_lshl_b32 s%d, s%d, 12", S_T1, S_W); a("s_add_u32 s%d, s%d, s%d", S_T0, S_T0, S_T1)
        for i in range(4): a("buffer_load_dwordx4 v[208:211], v%d, s[%d:%d], s%d offen offset:%d", V_L16, SRD_TWO, SRD_TWO + 3, S_T0, i * 1024)
        a("s_mul_i32 s%d, s2, 7168", S_T0); a("s_lshl_b32 s%d, s%d, 11", S_T1, S_W); a("s_add_u32 s%d, s%d, s%d", S_T0, S_T0, S_T1)
        for i in range(2): a("buffer_load_dwordx4 v[208:211], v%d, s[%d:%d], s%d offen offset:%d", V_L16, SRD_TWD, SRD_TWD + 3, S_T0, i * 1024)
    a("s_waitcnt lgkmcnt(0)")
    stamp(a, 3)
    a.label("KF_loop")
    emit_body(a, cfg, per + per)
    a("s_cmp_lt_u32 s%d, 16", S_CNT); a("s_cbranch_scc1 KF_loop")
    stamp(a, 4)
    a.label("KF_tailcode")
    return cfg

def final_pv(a, cfg):
    SQ = cfg.get("sq", (2, 3))
    for s in vreads(0): a(s)
    for ins in cfg["_spill7"]: a(ins)
    a("s_waitcnt lgkmcnt(0)"); a("s_nop 1")
    for s in pv_mfmas(1, cfg.get("pv_order", 0))[0]: a(s)
    for qb in SQ: a(ones_mfma(qb, 1))
    a("s_nop 7")
    for qb in SQ: a("v_mul_f32 v%d, s%d, v%d", V_L + qb, S_Q25, V_LM + 4 * qb)

def finalize(a, vm, cfg):
    a.label("KF_fin")
    ls = [V_L + qb for qb in range(4)]
    allreduce_g(a, ls, [V_X + qb for qb in range(4)], "v_add_f32")
    a("s_mov_b32 s%d, 0x5f800000", S_T0)
    a("s_mov_b64 s[%d:%d], 0", S_BAD, S_BAD + 1)
    for qb in range(4):
        a("v_cmp_ngt_f32 vcc, s%d, v%d", S_T0, V_L + qb); a("s_nop 0"); a("s_or_b64 s[%d:%d], s[%d:%d], vcc", S_BAD, S_BAD + 1, S_BAD, S_BAD + 1)
    rl = [V_X + 4 + qb for qb in range(4)]
    for qb in range(4): a("v_rcp_f32 v%d, v%d", rl[qb], V_L + qb)
    ones = V_X + 8; chk = V_X + 12
    for i in range(4): a("v_mov_b32 v%d, 0x3f803f80", ones + i)
    first = True
    for p in range(4):
        for qb in range(4):
            tb_ = 108 + 8 * ((p * 4 + qb) % 2)
            for b in range(2):
                o = A_O + ((2 * p + b) * 4 + qb) * 4
                for r in range(4): a("v_accvgpr_read_b32 v%d, a%d", tb_ + 4 * b + r, o + r)
            for e in range(8): a("v_mul_f32 v%d, v%d, v%d", tb_ + e, tb_ + e, rl[qb])
            o = 208 + 4 * ((p * 4 + qb) % 4) if False else 124 + 4 * ((p * 4 + qb) % 1)
            o = 52 + 4 * ((p * 4 + qb) % 2)
            for e in range(4): a("v_cvt_pk_bf16_f32 v%d, v%d, v%d", o + e, tb_ + 2 * e, tb_ + 2 * e + 1)
            a("s_mov_b32 s%d, %d", S_T1, p * 4096)
            a("buffer_store_dwordx4 v[%d:%d], v%d, s[%d:%d], s%d offen offset:%d sc1", o, o + 3, V_L16, SRD_O, SRD_O + 3, S_T1, qb * 1024); vm.add("ost")
            a("%s v[%d:%d], v[%d:%d], v[%d:%d], %s", M, chk, chk + 3, ones, ones + 3, o, o + 3, "0" if first else "v[%d:%d]" % (chk, chk + 3))
            first = False
    a("s_nop 7")
    a("s_mov_b32 s%d, 0x7f800000", S_T0)
    a("v_cmp_ngt_f32 vcc, s%d, abs(v%d)", S_T0, chk) if False else a("v_cmp_nlt_f32_e64 vcc, abs(v%d), s%d", chk, S_T0)
    a("s_nop 0"); a("s_or_b64 s[%d:%d], s[%d:%d], vcc", S_BAD, S_BAD + 1, S_BAD, S_BAD + 1)

def slow_path(a):
    a("s_mov_b32 s%d, 1", S_REDO)
    a("s_waitcnt vmcnt(0)")
    a("s_mov_b32 s%d, s%d", S_T2, S_TM0)
    kt = [V_S[1] + i for i in range(4)]; vt = [V_S[1] + 4 + i for i in range(8)]
    for ds in range(4):
        a("v_and_b32 v%d, 0xfff, v%d", kt[ds], V_KA + ds); a("v_add_u32 v%d, s%d, v%d", kt[ds], S_T2, kt[ds])
    for db in range(8):
        a("v_and_b32 v%d, 0xfff, v%d", vt[db], V_VA + db); a("v_add_u32 v%d, s%d, v%d", vt[db], S_T2, vt[db]); a("v_add_u32 v%d, 0x2000, v%d", vt[db], vt[db])
    for i in range(128): a("v_accvgpr_write_b32 a%d, 0", A_O + i)
    for i in range(4): a("v_mov_b32 v%d, 0", V_L + i)
    mrun = [V_NEGM + qb for qb in range(4)]
    for qb in range(4): a("v_mov_b32 v%d, 0xff800000", mrun[qb])
    a("s_mov_b32 s%d, 0", S_KOFF); a("s_mov_b32 s%d, 4096", S_KOFF2); a("s_mov_b32 s%d, 0", S_CNT)
    a("s_mov_b32 s%d, s%d", S_KM0, S_T2); a("s_add_u32 s%d, s%d, 0x2000", S_VM0, S_T2)
    a.label("KF_slow")
    for pre, ins in tile_dma(SRD_K, S_KOFF, S_KOFF2, S_KM0) + tile_dma(SRD_V, S_KOFF, S_KOFF2, S_VM0):
        for s in pre: a(s); a("s_nop 0")
        a(ins)
    a("s_waitcnt vmcnt(0)")
    for s in kreads(0, kt): a(s)
    a("s_waitcnt lgkmcnt(0)")
    for s in vreads(0, vt): a(s)
    for s in qk_mfmas(0, lambda qb: "0")[0]: a(s)
    a("s_nop 7")
    mx = [V_X + 8 + qb for qb in range(4)]
    for qb in range(4):
        s0 = V_S[0] + qb * 4; s1 = V_S[0] + (4 + qb) * 4
        a("v_max3_f32 v%d, v%d, v%d, v%d", mx[qb], s0, s0 + 1, s0 + 2)
        a("v_max3_f32 v%d, v%d, v%d, v%d", mx[qb], mx[qb], s0 + 3, s1)
        a("v_max3_f32 v%d, v%d, v%d, v%d", mx[qb], mx[qb], s1 + 1, s1 + 2)
        a("v_max3_f32 v%d, v%d, v%d, v%d", mx[qb], mx[qb], s1 + 3, mrun[qb])
    allreduce_g(a, mx, [V_X + 12 + qb for qb in range(4)], "v_max_f32")
    al = [V_X + 4 + qb for qb in range(4)]
    for qb in range(4): a("v_sub_f32 v%d, v%d, v%d", al[qb], mrun[qb], mx[qb])
    for qb in range(4): a("v_exp_f32 v%d, v%d", al[qb], al[qb])
    for qb in range(4): a("v_mov_b32 v%d, v%d", mrun[qb], mx[qb])
    for qb in range(4): a("v_mul_f32 v%d, v%d, v%d", V_L + qb, V_L + qb, al[qb])
    for qb in range(4):
        for kb in range(2):
            s0 = V_S[0] + (kb * 4 + qb) * 4
            for r in range(4): a("v_sub_f32 v%d, v%d, v%d", s0 + r, s0 + r, mx[qb])
            for r in range(4): a("v_exp_f32 v%d, v%d", s0 + r, s0 + r)
            a("s_nop 0")
            for r in range(4): a("v_add_f32 v%d, v%d, v%d", V_L + qb, V_L + qb, s0 + r)
            a("v_cvt_pk_bf16_f32 v%d, v%d, v%d", V_P[0] + 4 * qb + 2 * kb, s0, s0 + 1)
            a("v_cvt_pk_bf16_f32 v%d, v%d, v%d", V_P[0] + 4 * qb + 2 * kb + 1, s0 + 2, s0 + 3)
    for db in range(8):
        for qb in range(4):
            o = A_O + (db * 4 + qb) * 4
            for r in range(4): a("v_accvgpr_read_b32 v%d, a%d", V_T + r, o + r)
            for r in range(4): a("v_mul_f32 v%d, v%d, v%d", V_T + r, V_T + r, al[qb])
            for r in range(4): a("v_accvgpr_write_b32 a%d, v%d", o + r, V_T + r)
    a("s_waitcnt lgkmcnt(0)"); a("s_nop 1")
    for s in pv_mfmas(0)[0]: a(s)
    a("s_add_u32 s%d, s%d, 8192", S_KOFF, S_KOFF); a("s_add_u32 s%d, s%d, 8192", S_KOFF2, S_KOFF2)
    a("s_add_u32 s%d, s%d, 1", S_CNT, S_CNT)
    a("s_cmp_lt_u32 s%d, 64", S_CNT); a("s_cbranch_scc1 KF_slow")
    a("s_nop 7")
    a("s_branch KF_pre")

NH, NO = 14, 32
NS = NH + NO
RS = 272
REG = 64 * RS
V_TA = 11
V_TR = 18
V_TASET = 76
V_TB = 128

def tail_setup(a):
    a("s_load_dwordx2 s[60:61], s[0:1], 32")
    a("s_load_dwordx2 s[62:63], s[0:1], 64")
    a("s_and_b32 s%d, s2, 7", S_TGT); a("s_lshl_b32 s%d, s%d, 2", S_TGT, S_TGT)
    a("s_lshr_b32 s%d, s2, 6", S_T0); a("s_add_u32 s%d, s%d, s%d", S_TGT, S_TGT, S_T0)
    a("s_bfe_u32 s%d, s2, 0x30003", S_NGT); a("s_lshl_b32 s%d, s%d, 7", S_NGT, S_NGT)
    a("s_lshl_b32 s%d, s%d, 19", S_T0, S_TGT); a("s_add_u32 s%d, s%d, 0x%x", S_T0, S_T0, WS_O)
    srd_off(a, SRD_TO, 4, 5, "s%d" % S_T0, 524288)
    a("s_mul_i32 s%d, s%d, 229376", S_T0, S_TGT); a("s_add_u32 s%d, s%d, 0x%x", S_T0, S_T0, WS_H)
    srd_off(a, SRD_TH, 4, 5, "s%d" % S_T0, 229376)
    a("s_waitcnt lgkmcnt(0)")
    a("s_sub_u32 s%d, 0x400000, s%d", S_T0, S_NGT); srd_off(a, SRD_TWO, 60, 61, "s%d" % S_NGT, "s%d" % S_T0)
    a("s_sub_u32 s%d, 0x1c0000, s%d", S_T0, S_NGT); srd_off(a, SRD_TWD, 62, 63, "s%d" % S_NGT, "s%d" % S_T0)
    a("s_lshl_b32 s%d, s%d, 15", S_TM0, S_W); a("s_lshr_b32 s%d, s%d, 1", S_T0, S_W); a("s_lshl_b32 s%d, s%d, 13", S_T0, S_T0); a("s_add_u32 s%d, s%d, s%d", S_TM0, S_TM0, S_T0)
    t0, t1, t2, t3 = V_X, V_X + 1, V_X + 2, V_X + 3
    a("v_lshrrev_b32 v2, 3, v1"); a("v_lshrrev_b32 v3, 4, v1")
    a("v_and_b32 v%d, 7, v1", t0); a("v_lshlrev_b32 v%d, 1, v3", t1); a("v_xor_b32 v%d, v%d, v%d", t0, t0, t1)
    a("v_lshlrev_b32 v%d, 4, v%d", t0, t0); a("v_lshl_add_u32 v%d, v2, 10, v%d", V_TA, t0)
    for i in range(1, 4): a("v_add_u32 v%d, %d, v%d", V_TA + i, i * 7168, V_TA)
    a("v_and_b32 v4, 15, v1"); a("v_lshrrev_b32 v4, 2, v4"); a("v_and_b32 v5, 3, v1"); a("v_and_b32 v6, 1, v3")
    a("v_lshl_add_u32 v%d, v6, 2, v4", t0); a("v_and_b32 v%d, 6, v%d", t1, t0)
    a("v_lshrrev_b32 v%d, 1, v3", t2); a("v_lshlrev_b32 v%d, 10, v%d", t2, t2); a("v_lshl_add_u32 v%d, v%d, 7, v%d", t2, t0, t2)
    a("v_and_b32 v%d, 1, v5", t3); a("v_lshl_add_u32 v%d, v%d, 3, v%d", t2, t3, t2); a("v_add_u32 v%d, s%d, v%d", t2, S_TM0, t2)
    a("v_lshrrev_b32 v5, 1, v5")
    for nb in range(4):
        a("v_add_u32 v%d, %d, v5", t3, 2 * nb); a("v_xor_b32 v%d, v%d, v%d", t3, t3, t1); a("v_lshl_add_u32 v%d, v%d, 4, v%d", V_TR + nb, t3, t2)

def tail_issue_a(x):
    if x >= NS: return []
    sa, ra = (S_TA0, SRD_TWD) if x < NH else (S_TA1, SRD_TWO)
    L = [("s", "s_add_u32 m0, s%d, %d" % (S_TM0, (x % 8) * 4096)), ("s", "s_nop 0")]
    for i in range(4): L.append(("a%d" % x, "buffer_load_dwordx4 v%d, s[%d:%d], s%d offen offset:%d lds" % (V_TA + i, ra, ra + 3, sa, i * 1024)))
    L.append(("s", "s_add_u32 s%d, s%d, 32768" % (sa, sa)))
    return L

def tail_issue_b(x):
    if x >= NS: return []
    sb, rb = (S_TB0, SRD_TH) if x < NH else (S_TB1, SRD_TO)
    L = []
    for tb in range(4):
        r = V_TB + 16 * (x % 8) + 4 * tb
        L.append(("b%d" % x, "buffer_load_dwordx4 v[%d:%d], v%d, s[%d:%d], s%d offen offset:%d sc1" % (r, r + 3, V_L16, rb, rb + 3, sb, tb * 1024)))
    L.append(("s", "s_add_u32 s%d, s%d, 4096" % (sb, sb)))
    return L

def emit_vm(a, vm, items):
    for tag, s in items:
        a(s)
        if tag != "s": vm.add(tag)

D0 = 4
def tail_prefetch(a, vm):
    a.label("KF_pre")
    a("s_mul_i32 s%d, s%d, %d", S_TB0, S_W, NH * 4096); a("s_mul_i32 s%d, s%d, %d", S_TA0, S_W, NH * 32768)
    a("s_lshl_b32 s%d, s%d, 17", S_TB1, S_W); a("s_lshl_b32 s%d, s%d, 20", S_TA1, S_W)
    a("s_and_b32 s%d, s2, 7", S_T2); a("s_lshl_b32 s%d, s%d, 4", S_T2, S_T2); a("s_add_u32 s%d, s%d, 4", S_T2, S_T2)
    a("v_mov_b32 v2, s%d", S_T2)
    a("buffer_load_dword v3, v2, s[%d:%d], 0 offen sc1", SRD_DBG, SRD_DBG + 3); vm.add("pollh")
    for x in range(D0): emit_vm(a, vm, tail_issue_a(x))

def tail_prefetch2(a, vm):
    a("s_waitcnt vmcnt(%d)", vm.wait_for({"pollh"}))
    a("v_readfirstlane_b32 s96, v3"); a("s_nop 3")
    a("s_cmp_ge_u32 s96, 28"); a("s_cbranch_scc1 KF_phA")
    poll(a, "KF_ph", None, 28)
    a.label("KF_phA")
    for x in range(D0): emit_vm(a, vm, tail_issue_b(x))

def tail_main(a, vm, cfg):
    D = cfg.get("tD", 6)
    ASET = lambda x: V_TASET + 16 * (x % 2)
    ACC = lambda x: 192 if x < NH else 128
    lds = []
    def areads(x):
        for nb in range(4):
            for u in range(2):
                r = ASET(x) + 4 * nb + 2 * u
                a("ds_read_b64_tr_b16 v[%d:%d], v%d offset:%d", r, r + 1, V_TR + nb, (x % 8) * 4096 + u * 2048)
    for x in range(D0, D):
        emit_vm(a, vm, tail_issue_a(x)); emit_vm(a, vm, tail_issue_b(x))
    a("s_waitcnt vmcnt(%d)", vm.wait_for({"a0", "b0"}))
    areads(0)
    XP = cfg.get("tXP", 10)
    bnext = D
    for x in range(NS):
        mf = []
        for nb in range(4):
            for tb in range(4):
                d = ACC(x) + (tb * 4 + nb) * 4
                c = "0" if x in (0, NH) else "a[%d:%d]" % (d, d + 3)
                b = V_TB + 16 * (x % 8) + 4 * tb
                mf.append("%s a[%d:%d], v[%d:%d], v[%d:%d], %s" % (M, d, d + 3, ASET(x) + 4 * nb, ASET(x) + 4 * nb + 3, b, b + 3, c))
        emit_vm(a, vm, tail_issue_a(x + D))
        if x == XP - 2:
            a("s_and_b32 s%d, s2, 7", S_T2); a("s_lshl_b32 s%d, s%d, 4", S_T2, S_T2); a("s_add_u32 s%d, s%d, 128", S_T2, S_T2)
            a("v_mov_b32 v4, s%d", S_T2)
            a("buffer_load_dword v5, v4, s[%d:%d], 0 offen sc1", SRD_DBG, SRD_DBG + 3); vm.add("pollo")
        if x == XP:
            a("s_waitcnt vmcnt(%d)", vm.wait_for({"pollo"}))
            a("v_readfirstlane_b32 s96, v5"); a("s_nop 3")
            a("s_cmp_ge_u32 s96, 32"); a("s_cbranch_scc1 KF_poA")
            a("v_mov_b32 v2, v4")
            poll(a, "KF_po", None, 32)
            a.label("KF_poA")
        lim = x + D
        while bnext <= lim and bnext < NS and (bnext < NH or x >= XP):
            emit_vm(a, vm, tail_issue_b(bnext)); bnext += 1
        if x + 1 < NS:
            a("s_waitcnt vmcnt(%d)", vm.wait_for({"a%d" % (x + 1), "b%d" % (x + 1)}))
            areads(x + 1)
            a("s_waitcnt lgkmcnt(8)")
        else: a("s_waitcnt lgkmcnt(0)")
        for l in mf: a(l)
        if x == cfg.get("tSIG", 1):
            a("s_waitcnt vmcnt(%d)", vm.wait_for({"ost"}))
            a("s_barrier")
            a("s_lshl_b32 s%d, s%d, 4", S_T2, S_QB); a("s_add_u32 s%d, s%d, 128", S_T2, S_T2); a("v_mov_b32 v6, s%d", S_T2)
            signal(a, 6, label="KF_sigo"); vm.add("sig")
            vm.ops.pop()
        if x == NH - 1: stamp(a, 5)

def tail_epilogue(a):
    stamp(a, 6)
    a("s_barrier")
    a("v_and_b32 v16, 15, v1"); a("v_lshrrev_b32 v5, 4, v1")
    a("v_mul_u32_u24 v16, %d, v16", RS); a("v_lshl_add_u32 v16, v5, 4, v16")
    a("s_mul_i32 s%d, s%d, %d", S_T0, S_W, 2 * REG); a("v_add_u32 v16, s%d, v16", S_T0)
    a("s_nop 7")
    for mat in range(2):
        for tb in range(4):
            for nb in range(4):
                d = 128 + 64 * mat + (tb * 4 + nb) * 4
                a("ds_write_b128 v16, a[%d:%d] offset:%d", d, d + 3, mat * REG + tb * 16 * RS + nb * 64)
    a("v_lshrrev_b32 v17, 2, v0"); a("v_and_b32 v18, 3, v0")
    a("s_lshl_b32 s%d, s%d, 16", S_T0, S_TGT); a("s_add_u32 s%d, s%d, s%d", S_T0, S_T0, S_NGT)
    a("v_lshlrev_b32 v19, 10, v17"); a("v_lshl_add_u32 v19, v18, 5, v19"); a("v_add_u32 v19, s%d, v19", S_T0)
    a("buffer_load_dwordx4 v[20:23], v19, s[%d:%d], 0 offen", SRD_XF, SRD_XF + 3)
    a("buffer_load_dwordx4 v[24:27], v19, s[%d:%d], 0 offen offset:16", SRD_XF, SRD_XF + 3)
    a("v_mul_u32_u24 v28, %d, v17", RS); a("v_lshl_add_u32 v28, v18, 6, v28"); a("v_add_u32 v29, %d, v28", 4 * REG)
    a("s_waitcnt lgkmcnt(0)"); a("s_barrier")
    for mat in range(2):
        for w in range(4):
            for q in range(4):
                r = 32 + mat * 64 + w * 16 + q * 4
                a("ds_read_b128 v[%d:%d], v%d offset:%d", r, r + 3, 28 if w < 2 else 29, (w % 2) * 2 * REG + mat * REG + q * 16)
    a("s_waitcnt lgkmcnt(0)")
    for mat in range(2):
        b = 32 + mat * 64
        for i in range(16):
            a("v_add_f32 v%d, v%d, v%d", b + i, b + i, b + 16 + i); a("v_add_f32 v%d, v%d, v%d", b + 32 + i, b + 32 + i, b + 48 + i)
        for i in range(16): a("v_add_f32 v%d, v%d, v%d", b + i, b + i, b + 32 + i)
    for i in range(8):
        a("v_cvt_pk_bf16_f32 v%d, v%d, v%d", 48 + i, 32 + 2 * i, 33 + 2 * i); a("v_cvt_pk_bf16_f32 v%d, v%d, v%d", 56 + i, 96 + 2 * i, 97 + 2 * i)
    for i in range(8):
        a("v_lshlrev_b32 v%d, 16, v%d", 32 + 2 * i, 48 + i); a("v_and_b32 v%d, 0xffff0000, v%d", 33 + 2 * i, 48 + i)
        a("v_lshlrev_b32 v%d, 16, v%d", 96 + 2 * i, 56 + i); a("v_and_b32 v%d, 0xffff0000, v%d", 97 + 2 * i, 56 + i)
    a("s_mov_b32 s%d, 0xbfb8aa3b", S_T0)
    for i in range(16): a("v_mul_f32 v%d, s%d, v%d", 64 + i, S_T0, 96 + i)
    for i in range(16): a("v_exp_f32 v%d, v%d", 64 + i, 64 + i)
    for i in range(16): a("v_add_f32 v%d, 1.0, v%d", 64 + i, 64 + i)
    for i in range(16): a("v_rcp_f32 v%d, v%d", 64 + i, 64 + i)
    for i in range(16): a("v_mul_f32 v%d, v%d, v%d", 64 + i, 64 + i, 96 + i)
    for i in range(8): a("v_cvt_pk_bf16_f32 v%d, v%d, v%d", 56 + i, 64 + 2 * i, 65 + 2 * i)
    for i in range(8):
        a("v_lshlrev_b32 v%d, 16, v%d", 64 + 2 * i, 56 + i); a("v_and_b32 v%d, 0xffff0000, v%d", 65 + 2 * i, 56 + i)
    for i in range(16): a("v_mul_f32 v%d, v%d, v%d", 64 + i, 64 + i, 32 + i)
    for i in range(8): a("v_cvt_pk_bf16_f32 v%d, v%d, v%d", 56 + i, 64 + 2 * i, 65 + 2 * i)
    a("s_waitcnt vmcnt(0)")
    for i in range(8):
        a("v_lshlrev_b32 v%d, 16, v%d", 64 + 2 * i, 56 + i); a("v_and_b32 v%d, 0xffff0000, v%d", 65 + 2 * i, 56 + i)
        a("v_lshlrev_b32 v%d, 16, v%d", 32 + 2 * i, 20 + i); a("v_and_b32 v%d, 0xffff0000, v%d", 33 + 2 * i, 20 + i)
    for i in range(16): a("v_add_f32 v%d, v%d, v%d", 64 + i, 64 + i, 32 + i)
    for i in range(8): a("v_cvt_pk_bf16_f32 v%d, v%d, v%d", 56 + i, 64 + 2 * i, 65 + 2 * i)
    a("buffer_store_dwordx4 v[56:59], v19, s[%d:%d], 0 offen", SRD_OUT, SRD_OUT + 3)
    a("buffer_store_dwordx4 v[60:63], v19, s[%d:%d], 0 offen offset:16", SRD_OUT, SRD_OUT + 3)

def kernel(cfg=None):
    cfg = dict(cfg or {})
    a = Asm()
    vm = VM()
    a.label("KF_start")
    setup(a, cfg)
    vm.add("ln"); vm.add("ln")
    gemm(a, vm, cfg)
    gemm_epilogue(a, vm, cfg)
    tail_setup(a)
    cfg = attention(a, cfg)
    final_pv(a, cfg)
    vm = VM()
    tail_prefetch(a, vm)
    tail_prefetch2(a, vm)
    finalize(a, vm, cfg)
    a("s_cmp_eq_u32 s%d, 0", S_REDO); a("s_cbranch_scc0 KF_tail")
    a("s_cmp_eq_u64 s[%d:%d], 0", S_BAD, S_BAD + 1); a("s_cbranch_scc1 KF_tail")
    slow_path(a)
    a.label("KF_tail")
    tail_main(a, vm, cfg)
    tail_epilogue(a)
    stamp(a, 7)
    stamp_flush(a)
    a.label("KF_end")
    a("s_endpgm")
    a.label("KF_codeend")
    return a.text()

HEADER = open("cdna_kernels/%s.s.ref" % HDR).read().split("; Override launch")[0]
def build(cfg=None, check=True):
    t = kernel(cfg)
    if check: hz.check(t)
    name = HDR + "_kernel"
    s = HEADER + "; @launch grid=(256,1,1) block=(256,1,1) lds=%d\n" % LDS_BYTES
    s += '.amdgcn_target "amdgcn-amd-amdhsa--gfx950"\n.text\n' + kernel_begin(name) + t
    s += '.section .rodata,"a"\n.p2align 6\n' + kernel_desc(name, 512, 102, 256)
    return s

if __name__ == "__main__":
    import sys
    if "--stamp" in sys.argv: STAMP["on"] = True; sys.argv.remove("--stamp")
    out = sys.argv[1] if len(sys.argv) > 1 else "f1.s"
    open(out, "w").write(build())
```
